```python
import torch

def _softmax(x, axis=-1):
    return torch.softmax(x, dim=axis)
def _gelu(x):
    return torch.nn.functional.gelu(x, approximate="tanh")
def _silu(x):
    return torch.nn.functional.silu(x)
def _sigmoid(x):
    return torch.sigmoid(x)
def _layernorm(x, axis=-1, eps=1e-5):
    m = x.mean(dim=axis, keepdim=True)
    v = x.var(dim=axis, keepdim=True, unbiased=False)
    return (x - m) / torch.sqrt(v + eps)
def _scatter_add(tgt, idx, src, axis=0):
    return tgt.clone().index_add_(axis, idx, src)
def _segment_sum(src, seg, n):
    out = torch.zeros((n,) + src.shape[1:], dtype=src.dtype)
    return out.index_add_(0, seg, src)
def _pad(x, pw):
    flat = tuple(v for pair in reversed(pw) for v in pair)
    return torch.nn.functional.pad(x, flat)

kernel_name = 'standalone__gqa_softmax__near_ridge'

def setup_inputs():

    _w = (lambda a: (lambda t: t.to(torch.bfloat16) if t.is_floating_point() else t)(torch.as_tensor(a)))
    B, Hq, Hkv, Sq, Sk, D = 8, 32, 32, 288, 512, 128
    return {
        "q": _w((lambda *s: torch.randn(*s, dtype=torch.bfloat16) * 0.8)(B, Hq, Sq, D)),
        "k": _w((lambda *s: torch.randn(*s, dtype=torch.bfloat16) * 0.8)(B, Hkv, Sk, D)),
        "v": _w((lambda *s: torch.randn(*s, dtype=torch.bfloat16) * 0.05)(B, Hkv, Sk, D)),
    }

def reference(q, k, v):
    B, Hq, Sq, D = q.shape
    Hkv = k.shape[1]
    rep = Hq // Hkv
    k = (lambda x, n, axis: torch.repeat_interleave(x, n, dim=axis))(k, rep, axis=1)
    v = (lambda x, n, axis: torch.repeat_interleave(x, n, dim=axis))(v, rep, axis=1)
    scale = D ** -0.5
    scores = torch.einsum("bhqd,bhkd->bhqk", q, k) * scale
    p = _softmax(scores, axis=-1)
    return torch.einsum("bhqk,bhkd->bhqd", p, v)
```

```python
def vr(a, n=1): return [('v', a + i) for i in range(n)]
def ar(a, n=1): return [('a', a + i) for i in range(n)]
def sr(a, n=1): return [('s', a + i) for i in range(n)]
def V(a, n=1): return f"v{a}" if n == 1 else f"v[{a}:{a+n-1}]"
def A(a, n=1): return f"a{a}" if n == 1 else f"a[{a}:{a+n-1}]"
def S(a, n=1): return f"s{a}" if n == 1 else f"s[{a}:{a+n-1}]"
class R:
    def __init__(self, kind, base, n): self.kind, self.base, self.n = kind, base, n
    def regs(self): return [(self.kind, self.base + i) for i in range(self.n)]
    def __str__(self): return (V if self.kind == 'v' else A)(self.base, self.n)
    def sub(self, off, n): return R(self.kind, self.base + off, n)
def RV(b, n=1): return R('v', b, n)
def RA(b, n=1): return R('a', b, n)
M0 = [('m0', 0)]
VCC = [('vcc', 0)]

class Ins:
    __slots__ = ("text", "kind", "rd", "wr", "srcc", "ws", "passes")
    def __init__(self, text, kind, rd=(), wr=(), srcc=(), ws=1, passes=8):
        self.text = text; self.kind = kind
        self.rd = set(rd); self.wr = set(wr); self.srcc = list(srcc); self.ws = ws; self.passes = passes

VAL = ('valu', 'trans', 'permlane', 'dpp', 'readlane')
class Emitter:
    def __init__(self):
        self.out = []; self.dsq = []; self.nops = 0; self.auto_nop_log = []; self.auto_wait_log = []; self.mfma_time = True
    def required_gap(self, J, I):
        need = 0
        jw, iw, ir = J.wr, I.wr, I.rd
        jv = {r for r in jw if r[0] in ('v', 'a')}
        js = {r for r in jw if r[0] in ('s', 'vcc', 'm0')}
        if J.kind in VAL:
            if I.kind == 'mfma' and (jv & ir): need = max(need, 2)
            if J.kind == 'trans' and I.kind != 'trans' and (jv & ir): need = max(need, 1)
            if J.kind == 'trans' and I.kind in ('ds', 'vmem', 'vmem_store', 'dma') and (jv & ir): need = max(need, 1)
            if I.kind in ('permlane', 'dpp') and (jv & (ir | (iw if I.kind == 'permlane' else set()))): need = max(need, 2)
            if I.kind == 'readlane' and (jv & ir): need = max(need, 1)
            if js:
                if I.kind in VAL + ('mfma',) and (js & ir): need = max(need, 2)
                if I.kind == 'readlane' and (js & ir): need = max(need, 4)
                if I.kind in ('vmem', 'vmem_store', 'dma') and (js & ir): need = max(need, 5)
                if I.kind in ('salu', 'branch') and (js & ir): need = max(need, 1)
                if I.kind == 'branch' and ('vcc', 0) in js: need = max(need, 5)
        if J.kind == 'mfma':
            D = jv
            lat = {4: 8, 8: 12}[J.passes]
            if I.kind == 'mfma':
                c = set(I.srcc)
                ab = ir - c
                if D & ab: need = max(need, lat)
                if D & c:
                    if c == D and I.passes == J.passes: pass
                    else: need = max(need, lat - 2)
                if (D & iw) and not (c == D): need = max(need, lat - 2)
            else:
                if D & (ir | iw): need = max(need, lat)
            if I.kind in VAL and (set(J.srcc) & iw):
                need = max(need, {4: 3, 8: 7}[J.passes])
        if J.kind == 'salu' and ('m0', 0) in jw and I.kind == 'dma': need = max(need, 1)
        if J.kind == 'vmem_store':
            if (J.rd & iw) and I.kind in VAL: need = max(need, 2)
            elif (J.rd & iw): need = max(need, 1)
        return need
    def _gap_needed(self, I, hist):
        seq = [J for J in hist if J.kind != 'label'] + [I]
        t = []; cur = 0; lastm = None
        for J in seq:
            if J.kind == 'mfma' and lastm is not None and self.mfma_time:
                cur = max(cur, lastm[0] + lastm[1])
            t.append(cur)
            if J.kind == 'mfma': lastm = (cur, J.passes)
            cur += J.ws
        tI = t[-1]; worst = 0
        for J, tj in zip(seq[:-1], t[:-1]):
            need = self.required_gap(J, I)
            if need:
                have = tI - tj - J.ws
                if need > have: worst = max(worst, need - have)
        return worst
    def add(self, I):
        if I.kind not in ('label', 'comment'):
            g = self._gap_needed(I, [x for x in self.out[-60:] if x.kind != 'comment'])
            if g > 0:
                self.auto_nop_log.append((len(self.out), g, I.text))
                self.nop(g); self.nops += g
        self.out.append(I)
        return I
    def c(self, text): self.out.append(Ins("; " + text, 'comment', ws=0))
    def label(self, name): self.out.append(Ins(name + ":", 'label', ws=0))
    def salu(self, text, rd=(), wr=()): return self.add(Ins(text, 'salu', rd, wr))
    def valu(self, text, rd=(), wr=()):
        self.need(set(rd) | set(wr)); return self.add(Ins(text, 'valu', rd, wr))
    def trans(self, text, rd=(), wr=()):
        self.need(set(rd) | set(wr)); return self.add(Ins(text, 'trans', rd, wr))
    def permlane(self, text, rd=(), wr=()):
        self.need(set(rd) | set(wr)); return self.add(Ins(text, 'permlane', rd, wr))
    def readlane(self, text, rd=(), wr=()):
        self.need(set(rd)); return self.add(Ins(text, 'readlane', rd, wr))
    def branch(self, text, rd=()): return self.add(Ins(text, 'branch', rd))
    def raw(self, text, kind='salu', rd=(), wr=(), ws=1): return self.add(Ins(text, kind, rd, wr, ws=ws))
    def nop(self, n):
        while n > 0:
            k = min(n, 16); self.out.append(Ins(f"s_nop {k-1}", 'nop', ws=k)); n -= k
    def mfma16(self, D, Aop, Bop, C=None):
        rd = Aop.regs() + Bop.regs()
        if C is None: C = D
        if isinstance(C, str): ctext = C; srcc = []
        else: ctext = str(C); srcc = C.regs()
        self.need(set(rd) | set(srcc) | set(D.regs()))
        return self.add(Ins(f"v_mfma_f32_16x16x32_bf16 {D}, {Aop}, {Bop}, {ctext}", 'mfma', rd + srcc, D.regs(), srcc=srcc, passes=4))
    def ds_read(self, text, dst, addr):
        self.need(set(dst) | set(addr))
        self.add(Ins(text, 'ds', addr, dst)); self.dsq.append(set(dst))
    def ds_write(self, text, rd):
        self.need(set(rd))
        self.add(Ins(text, 'ds', rd, ())); self.dsq.append(set())
    def need(self, regs):
        last = -1
        for i, w in enumerate(self.dsq):
            if w & regs: last = i
        if last >= 0:
            n = len(self.dsq) - 1 - last
            n = min(n, 15)
            self.auto_wait_log.append((len(self.out), n))
            self.add(Ins(f"s_waitcnt lgkmcnt({n})", 'wait'))
            self.dsq = self.dsq[len(self.dsq) - n:] if n > 0 else []
    def wait_lgkm(self, n=0):
        assert n <= 15
        self.add(Ins(f"s_waitcnt lgkmcnt({n})", 'wait'))
        self.dsq = self.dsq[len(self.dsq) - n:] if n > 0 else []
    def wait_vm(self, n):
        assert n <= 63
        self.add(Ins(f"s_waitcnt vmcnt({n})", 'wait'))
    def barrier(self): self.add(Ins("s_barrier", 'salu'))
    def dma(self, text, rd): self.add(Ins(text, 'dma', list(rd) + M0, ()))
    def vload(self, text, rd, wr): self.add(Ins(text, 'vmem', rd, wr))
    def vstore(self, text, rd):
        self.need(set(rd)); self.add(Ins(text, 'vmem_store', rd, ()))
    def text(self):
        lines = []
        for I in self.out:
            lines.append(I.text if I.kind == 'label' else "    " + I.text)
        return "\n".join(lines) + "\n"
    def check_seq(self, seq, name=""):
        bad = []; hist = []
        for I in seq:
            if I.kind in ('label', 'comment'): continue
            g = self._gap_needed(I, hist[-60:])
            if g > 0: bad.append((name, g, I.text))
            hist.append(I)
        return bad
```

```python
KN = "standalone__gqa_softmax__near_ridge_kernel"
def head(lds=163840):
    return f"""; softmax(q k^T / sqrt(128)) v   B=8 H=32 Sq=288 Sk=512 D=128 (bf16), one workgroup (4 waves) per head.
; @launch grid=(256,1,1) block=(256,1,1) lds={lds}
.amdgcn_target "amdgcn-amd-amdhsa--gfx950"
.text
.globl {KN}
.p2align 8
.type {KN},@function
{KN}:
"""
def tail(nv=424):
    return f"""
.section .rodata,"a"
.p2align 6
.amdhsa_kernel {KN}
  .amdhsa_next_free_vgpr {nv}
  .amdhsa_next_free_sgpr 102
  .amdhsa_accum_offset 256
  .amdhsa_group_segment_fixed_size 0
  .amdhsa_kernarg_size 48
  .amdhsa_user_sgpr_count 2
  .amdhsa_user_sgpr_kernarg_segment_ptr 1
  .amdhsa_system_sgpr_workgroup_id_x 1
.end_amdhsa_kernel
"""
```

```python
from emit3 import *
import struct
def f32hex(x): return "0x%08x" % struct.unpack("<I", struct.pack("<f", x))[0]
CSCALE = 0.08838834764831845 * 1.4426950408889634

def slow_path(e, sQ, sK, sV, sO, sW, sPar, sBad, sBadX, end_label="L_end"):
    sBlk, sEnd, sRow, sKo, sKo2, sCnt, sC, sT = 80, 81, 82, 83, 84, 85, 86, 88
    vF, vVo, vSt, vA16, vA32, vM, vT, vT2 = 1, 2, 3, 4, 5, 6, 7, 8
    Qr = 16
    Kr = 32
    Sr = 64
    Pr = 72
    Lr = 76
    On = 80
    Or = 96
    Vu = 128
    Vf = 192
    def pad(): e.nop(16)
    e.c("---- run-time safety check: any row whose stand-in-max sum left the safe window is recomputed with its true max")
    e.salu(f"s_or_b64 {S(sT,2)}, {S(sBad,2)}, {S(sBadX,2)}", sr(sBad, 2) + sr(sBadX, 2), sr(sT, 2))
    e.salu(f"s_cmp_lg_u64 {S(sT,2)}, 0", sr(sT, 2), ())
    e.branch(f"s_cbranch_scc0 {end_label}")
    e.add(Ins("s_waitcnt vmcnt(0) lgkmcnt(0)", 'wait')); e.dsq = []
    pad()
    e.salu(f"s_cmp_lg_u64 {S(sBad,2)}, 0", sr(sBad, 2), ())
    e.salu(f"s_cselect_b32 {S(sBlk)}, 0, 4", (), sr(sBlk))
    e.salu(f"s_cmp_lg_u64 {S(sBadX,2)}, 0", sr(sBadX, 2), ())
    e.salu(f"s_cselect_b32 {S(sEnd)}, 5, 4", (), sr(sEnd))
    e.salu(f"s_cmp_lg_u32 {S(sPar)}, 0", sr(sPar), ())
    e.salu(f"s_cselect_b32 {S(sEnd)}, 4, {S(sEnd)}", sr(sEnd), sr(sEnd))
    e.salu(f"s_mov_b32 {S(sC)}, {f32hex(CSCALE)}", (), sr(sC))
    e.valu(f"v_and_b32 {V(vT)}, 15, v0", vr(0), vr(vT))
    e.valu(f"v_lshrrev_b32 {V(vT2)}, 4, v0", vr(0), vr(vT2))
    e.valu(f"v_lshlrev_b32 {V(vSt)}, 8, {V(vT)}", vr(vT), vr(vSt))
    e.valu(f"v_lshl_add_u32 {V(vF)}, {V(vT2)}, 4, {V(vSt)}", vr(vT2) + vr(vSt), vr(vF))
    e.valu(f"v_lshl_add_u32 {V(vSt)}, {V(vT2)}, 3, {V(vSt)}", vr(vT2) + vr(vSt), vr(vSt))
    e.valu(f"v_lshlrev_b32 {V(vVo)}, 10, {V(vT2)}", vr(vT2), vr(vVo))
    e.valu(f"v_lshl_add_u32 {V(vVo)}, {V(vT)}, 1, {V(vVo)}", vr(vT) + vr(vVo), vr(vVo))
    e.valu(f"v_xor_b32 {V(vA16)}, 16, v0", vr(0), vr(vA16))
    e.valu(f"v_lshlrev_b32 {V(vA16)}, 2, {V(vA16)}", vr(vA16), vr(vA16))
    e.valu(f"v_xor_b32 {V(vA32)}, 32, v0", vr(0), vr(vA32))
    e.valu(f"v_lshlrev_b32 {V(vA32)}, 2, {V(vA32)}", vr(vA32), vr(vA32))
    for i in range(4): e.valu(f"v_mov_b32 {V(On+i)}, 0x3f803f80", (), vr(On + i))
    e.label("L_sblk")
    e.salu(f"s_cmp_ge_u32 {S(sBlk)}, {S(sEnd)}", sr(sBlk) + sr(sEnd), ())
    e.branch(f"s_cbranch_scc1 {end_label}")
    e.salu(f"s_lshl_b32 {S(sRow)}, {S(sW)}, 14", sr(sW), sr(sRow))
    e.salu(f"s_lshl_b32 {S(sT)}, {S(sBlk)}, 12", sr(sBlk), sr(sT))
    e.salu(f"s_add_u32 {S(sRow)}, {S(sRow)}, {S(sT)}", sr(sRow) + sr(sT), sr(sRow))
    e.salu(f"s_lshr_b32 {S(sT)}, {S(sW)}, 1", sr(sW), sr(sT))
    e.salu(f"s_lshl_b32 {S(sT)}, {S(sT)}, 12", sr(sT), sr(sT))
    e.salu(f"s_add_u32 {S(sT)}, {S(sT)}, 65536", sr(sT), sr(sT))
    e.salu(f"s_cmp_eq_u32 {S(sBlk)}, 4", sr(sBlk), ())
    e.salu(f"s_cselect_b32 {S(sRow)}, {S(sT)}, {S(sRow)}", sr(sT) + sr(sRow), sr(sRow))
    for ks in range(4):
        e.vload(f"buffer_load_dwordx4 {V(Qr+4*ks,4)}, {V(vF)}, {S(sQ,4)}, {S(sRow)} offen offset:{64*ks}", vr(vF) + sr(sQ, 4) + sr(sRow), vr(Qr + 4 * ks, 4))
    e.valu(f"v_mov_b32 {V(vM)}, 0xff800000", (), vr(vM))
    e.salu(f"s_mov_b32 {S(sKo)}, 0", (), sr(sKo))
    e.label("L_sp1")
    for ks in range(4):
        e.vload(f"buffer_load_dwordx4 {V(Kr+4*ks,4)}, {V(vF)}, {S(sK,4)}, {S(sKo)} offen offset:{64*ks}", vr(vF) + sr(sK, 4) + sr(sKo), vr(Kr + 4 * ks, 4))
    e.wait_vm(0)
    for ks in range(4):
        e.mfma16(RV(Sr, 4), RV(Kr + 4 * ks, 4), RV(Qr + 4 * ks, 4), C=("0" if ks == 0 else None))
    pad()
    e.valu(f"v_max3_f32 {V(vM)}, {V(Sr)}, {V(Sr+1)}, {V(vM)}", vr(Sr, 2) + vr(vM), vr(vM))
    e.valu(f"v_max3_f32 {V(vM)}, {V(Sr+2)}, {V(Sr+3)}, {V(vM)}", vr(Sr + 2, 2) + vr(vM), vr(vM))
    e.salu(f"s_add_u32 {S(sKo)}, {S(sKo)}, 4096", sr(sKo), sr(sKo))
    e.salu(f"s_cmp_lt_u32 {S(sKo)}, 131072", sr(sKo), ())
    pad()
    e.branch("s_cbranch_scc1 L_sp1")
    for a in (vA16, vA32):
        e.ds_read(f"ds_bpermute_b32 {V(vT)}, {V(a)}, {V(vM)}", vr(vT), vr(a) + vr(vM))
        e.wait_lgkm(0)
        e.valu(f"v_max_f32 {V(vM)}, {V(vM)}, {V(vT)}", vr(vM) + vr(vT), vr(vM))
        pad()
    e.valu(f"v_mul_f32 {V(vM)}, {S(sC)}, {V(vM)}", sr(sC) + vr(vM), vr(vM))
    e.valu(f"v_sub_f32 {V(vM)}, 0, {V(vM)}", vr(vM), vr(vM))
    for i in range(4): e.valu(f"v_mov_b32 {V(Lr+i)}, 0", (), vr(Lr + i))
    for i in range(32): e.valu(f"v_mov_b32 {V(Or+i)}, 0", (), vr(Or + i))
    e.salu(f"s_mov_b32 {S(sKo)}, 0", (), sr(sKo))
    e.label("L_sp2")
    e.salu(f"s_add_u32 {S(sKo2)}, {S(sKo)}, 4096", sr(sKo), sr(sKo2))
    for kb in range(2):
        so = sKo if kb == 0 else sKo2
        for ks in range(4):
            d = Kr + 16 * kb + 4 * ks
            e.vload(f"buffer_load_dwordx4 {V(d,4)}, {V(vF)}, {S(sK,4)}, {S(so)} offen offset:{64*ks}", vr(vF) + sr(sK, 4) + sr(so), vr(d, 4))
    for half in range(2):
        for db in range(4 * half, 4 * half + 4):
            for j in range(8):
                so = sKo if j < 4 else sKo2
                d = Vu + 8 * db + j
                e.vload(f"buffer_load_ushort {V(d)}, {V(vVo)}, {S(sV,4)}, {S(so)} offen offset:{256*(j&3) + 32*db}", vr(vVo) + sr(sV, 4) + sr(so), vr(d))
        e.wait_vm(0)
    for db in range(8):
        for jj in range(4):
            lo, hi = Vu + 8 * db + 2 * jj, Vu + 8 * db + 2 * jj + 1
            e.valu(f"v_lshl_or_b32 {V(Vf+4*db+jj)}, {V(hi)}, 16, {V(lo)}", vr(hi) + vr(lo), vr(Vf + 4 * db + jj))
    for kb in range(2):
        for ks in range(4):
            e.mfma16(RV(Sr + 4 * kb, 4), RV(Kr + 16 * kb + 4 * ks, 4), RV(Qr + 4 * ks, 4), C=("0" if ks == 0 else None))
    pad()
    for i in range(8): e.valu(f"v_fma_f32 {V(Sr+i)}, {V(Sr+i)}, {S(sC)}, {V(vM)}", vr(Sr + i) + sr(sC) + vr(vM), vr(Sr + i))
    for i in range(8): e.trans(f"v_exp_f32 {V(Sr+i)}, {V(Sr+i)}", vr(Sr + i), vr(Sr + i))
    e.nop(2)
    for h in range(4): e.valu(f"v_cvt_pk_bf16_f32 {V(Pr+h)}, {V(Sr+2*h)}, {V(Sr+2*h+1)}", vr(Sr + 2 * h, 2), vr(Pr + h))
    e.nop(4)
    e.mfma16(RV(Lr, 4), RV(On, 4), RV(Pr, 4))
    for db in range(8): e.mfma16(RV(Or + 4 * db, 4), RV(Vf + 4 * db, 4), RV(Pr, 4))
    e.salu(f"s_add_u32 {S(sKo)}, {S(sKo)}, 8192", sr(sKo), sr(sKo))
    e.salu(f"s_cmp_lt_u32 {S(sKo)}, 131072", sr(sKo), ())
    pad()
    e.branch("s_cbranch_scc1 L_sp2")
    e.trans(f"v_rcp_f32 {V(vT)}, {V(Lr)}", vr(Lr), vr(vT))
    e.nop(2)
    for i in range(32): e.valu(f"v_mul_f32 {V(Or+i)}, {V(Or+i)}, {V(vT)}", vr(Or + i) + vr(vT), vr(Or + i))
    for db in range(8):
        for h in range(2):
            e.valu(f"v_cvt_pk_bf16_f32 {V(Vf+2*db+h)}, {V(Or+4*db+2*h)}, {V(Or+4*db+2*h+1)}", vr(Or + 4 * db + 2 * h, 2), vr(Vf + 2 * db + h))
    e.nop(2)
    for db in range(8):
        e.vstore(f"buffer_store_dwordx2 {V(Vf+2*db,2)}, {V(vSt)}, {S(sO,4)}, {S(sRow)} offen offset:{32*db}", vr(Vf + 2 * db, 2) + vr(vSt) + sr(sO, 4) + sr(sRow))
    e.wait_vm(0)
    e.salu(f"s_add_u32 {S(sBlk)}, {S(sBlk)}, 1", sr(sBlk), sr(sBlk))
    pad()
    e.branch("s_branch L_sblk")
```

```python
import sys, struct
from emit3 import *
from slow import slow_path

def f32hex(x): return "0x%08x" % struct.unpack("<I", struct.pack("<f", x))[0]
CSCALE = 0.08838834764831845 * 1.4426950408889634
SLOT = 16384; UNIT = 8192
KN = "standalone__gqa_softmax__near_ridge_kernel"

KA1, KA2, VA1, VA2 = 1, 2, 3, 4
VD = 5
VS = 9
T0 = 10
CM = 12
OB = 16
SB = 176
PF = 216
PS = 236
T1 = 252
aQ = 0
aK = 80
aV = 112
aL = 144
aONE = 164
sQ, sK, sV, sO = 12, 16, 20, 24
sW = 30; sP = 31
sKdst, sVdst, sDK, sDV, sKsrc, sVsrc = 32, 33, 34, 35, 36, 37
sPlus, sMinus = 40, 41
sVrd, sKrd = 38, 39
sA, sB, sC = 42, 43, 44
sW4k, sPar, sMask, sScale = 45, 46, 47, 48
sBad, sBadX = 50, 52
sLo, sHi = 54, 55
sT = 56

def O(q, db): return RV(OB + 32 * q + 4 * db, 4)
def Sb(q, kb): return RV(SB + 8 * q + 4 * kb, 4)
def Pb(first, q): return RV((PF if first else PS) + 4 * q, 4)
def Qf(q, ks): return RA(aQ + 16 * q + 4 * ks, 4)
def Kf(kb, ks): return RA(aK + 16 * kb + 4 * ks, 4)
def Vf(pool, db): return RA(pool + 4 * db, 4)
def Lb(q): return RA(aL + 4 * q, 4)

def gen(opts):
    e = Emitter()
    stamps = opts.get("stamps", 0)
    LDF = opts.get("ldflags", "nt"); STF = opts.get("stflags", "nt").replace("_", " ")
    abl = set(str(opts.get("abl", "")).split(","))
    st = {"inloop": False}
    def ab(x): return st["inloop"] and x in abl
    def stamp(idx):
        if stamps: e.salu(f"s_memrealtime {S(60+2*idx,2)}", (), sr(60 + 2 * idx, 2))
    smode = opts.get("smode", "p")
    def pstamp(i):
        if smode == "p": stamp(i)
    def tstamp(i):
        if smode == "t": stamp(i)
    def dma(srd, soff, i):
        if ab("nodma"): return
        off = f" offset:{1024*i}" if i else ""
        e.dma(f"buffer_load_dwordx4 {V(VD+i)}, {S(srd,4)}, {S(soff)} offen{off} {LDF} lds", vr(VD + i) + sr(srd, 4) + sr(soff))
    def dma4(srd, gconst, ldsconst, gbase=sW4k):
        e.salu(f"s_add_u32 {S(sA)}, {S(gbase)}, {gconst}", sr(gbase), sr(sA))
        e.salu(f"s_add_u32 m0, {S(sW4k)}, {ldsconst}", sr(sW4k), M0)
        for i in range(4): dma(srd, sA, i)

    stamp(0)
    e.salu("s_cmp_ge_u32 s2, 256"); e.branch("s_cbranch_scc1 L_end")
    e.salu("s_load_dwordx4 s[4:7], s[0:1], 0", (), sr(4, 4))
    e.salu("s_load_dwordx4 s[8:11], s[0:1], 16", (), sr(8, 4))
    if stamps: e.salu("s_load_dwordx2 s[58:59], s[0:1], 40", (), sr(58, 2))
    ln, t1, t2, t3, t4 = SB, SB + 1, SB + 2, SB + 3, SB + 4
    e.valu(f"v_lshrrev_b32 {V(t1)}, 6, v0", vr(0), vr(t1))
    e.valu(f"v_and_b32 v0, 63, v0", vr(0), vr(0))
    e.readlane(f"v_readfirstlane_b32 {S(sW)}, {V(t1)}", vr(t1), sr(sW))
    e.valu(f"v_bfe_u32 {V(t1)}, v0, 2, 2", vr(0), vr(t1))
    e.valu(f"v_lshrrev_b32 {V(t2)}, 4, v0", vr(0), vr(t2))
    e.valu(f"v_and_b32 {V(t3)}, 3, v0", vr(0), vr(t3))
    e.valu(f"v_lshlrev_b32 {V(t4)}, 8, {V(t1)}", vr(t1), vr(t4))
    e.valu(f"v_lshl_add_u32 {V(t4)}, {V(t2)}, 6, {V(t4)}", vr(t2) + vr(t4), vr(t4))
    e.valu(f"v_lshl_add_u32 {V(VD)}, {V(t3)}, 4, {V(t4)}", vr(t3) + vr(t4), vr(VD))
    for i in range(1, 4):
        e.valu(f"v_xor_b32 {V(VD+i)}, {((-i) & 3) << 4}, {V(VD)}", vr(VD), vr(VD + i))
    e.salu("s_mul_i32 s28, s2, 73728", (), sr(28)); e.salu("s_lshl_b32 s29, s2, 17", (), sr(29))
    e.salu(f"s_lshl_b32 {S(sW4k)}, {S(sW)}, 12", sr(sW), sr(sW4k))
    e.raw("s_waitcnt lgkmcnt(0)", 'wait')
    for (srd, ptr, off, size) in ((sK, 6, 29, 131072), (sQ, 4, 28, 73728), (sV, 8, 29, 131072), (sO, 10, 28, 73728)):
        e.salu(f"s_add_u32 {S(srd)}, {S(ptr)}, {S(off)}", (), sr(srd))
        e.salu(f"s_addc_u32 {S(srd+1)}, {S(ptr+1)}, 0", (), sr(srd + 1))
        e.salu(f"s_mov_b32 {S(srd+2)}, {size}", (), sr(srd + 2))
        e.salu(f"s_mov_b32 {S(srd+3)}, 0x20000", (), sr(srd + 3))
        if srd == sK: dma4(sK, 0, 0)
    e.salu(f"s_lshl_b32 {S(sB)}, {S(sW)}, 14", sr(sW), sr(sB))
    for b in range(4): dma4(sQ, b * 4096, (5 + b) * SLOT, gbase=sB)
    sXg = 49
    e.salu(f"s_lshr_b32 {S(sXg)}, {S(sW)}, 1", sr(sW), sr(sXg))
    e.salu(f"s_lshl_b32 {S(sXg)}, {S(sXg)}, 12", sr(sXg), sr(sXg))
    e.salu(f"s_and_b32 {S(sPar)}, {S(sW)}, 1", sr(sW), sr(sPar))
    e.salu(f"s_lshl_b32 {S(sA)}, {S(sPar)}, 13", sr(sPar), sr(sA))
    e.salu(f"s_xor_b32 {S(sB)}, {S(sA)}, {UNIT}", sr(sA), sr(sB))
    e.valu(f"v_sub_u32 {V(t4)}, 0, {V(t2)}", vr(t2), vr(t4))
    e.valu(f"v_and_b32 {V(t4)}, 3, {V(t4)}", vr(t4), vr(t4))
    e.valu(f"v_xor_b32 {V(t4)}, {V(t4)}, {V(t3)}", vr(t4) + vr(t3), vr(t4))
    e.valu(f"v_lshlrev_b32 {V(t4)}, 4, {V(t4)}", vr(t4), vr(t4))
    e.valu(f"v_lshl_add_u32 {V(t4)}, {V(t1)}, 6, {V(t4)}", vr(t1) + vr(t4), vr(t4))
    e.valu(f"v_lshl_add_u32 {V(t4)}, {V(t2)}, 10, {V(t4)}", vr(t2) + vr(t4), vr(t4))
    e.valu(f"v_add_u32 {V(t4)}, {SLOT}, {V(t4)}", vr(t4), vr(t4))
    e.valu(f"v_add_u32 {V(VA1)}, {S(sA)}, {V(t4)}", sr(sA) + vr(t4), vr(VA1))
    e.valu(f"v_add_u32 {V(VA2)}, {S(sB)}, {V(t4)}", sr(sB) + vr(t4), vr(VA2))
    e.valu(f"v_sub_u32 {V(t4)}, 0, {V(t1)}", vr(t1), vr(t4))
    e.valu(f"v_and_b32 {V(t4)}, 3, {V(t4)}", vr(t4), vr(t4))
    e.valu(f"v_xor_b32 {V(t4)}, {V(t4)}, {V(t2)}", vr(t4) + vr(t2), vr(t4))
    e.valu(f"v_lshlrev_b32 {V(t4)}, 4, {V(t4)}", vr(t4), vr(t4))
    e.valu(f"v_lshl_add_u32 {V(t4)}, {V(t3)}, 6, {V(t4)}", vr(t3) + vr(t4), vr(t4))
    e.valu(f"v_lshl_add_u32 {V(t4)}, {V(t1)}, 10, {V(t4)}", vr(t1) + vr(t4), vr(t4))
    e.valu(f"v_add_u32 {V(KA1)}, {S(sA)}, {V(t4)}", sr(sA) + vr(t4), vr(KA1))
    e.valu(f"v_add_u32 {V(KA2)}, {S(sB)}, {V(t4)}", sr(sB) + vr(t4), vr(KA2))
    QA = T0
    e.salu(f"s_add_u32 {S(sC)}, {S(sW4k)}, {5*SLOT}", sr(sW4k), sr(sC))
    e.valu(f"v_add_u32 {V(QA)}, {S(sC)}, {V(t4)}", sr(sC) + vr(t4), vr(QA))
    e.valu(f"v_add_u32 {V(QA+1)}, {4*SLOT}, {V(QA)}", vr(QA), vr(QA + 1))
    e.valu(f"v_and_b32 {V(t4)}, 15, v0", vr(0), vr(t4))
    e.valu(f"v_lshlrev_b32 {V(t4)}, 8, {V(t4)}", vr(t4), vr(t4))
    e.valu(f"v_lshl_add_u32 {V(VS)}, {V(t2)}, 4, {V(t4)}", vr(t2) + vr(t4), vr(VS))
    e.salu(f"s_mov_b32 {S(sMask)}, 0xffff0000", (), sr(sMask))
    e.salu(f"s_mov_b32 {S(sScale)}, {f32hex(CSCALE)}", (), sr(sScale))
    e.salu(f"s_mov_b32 {S(sPlus)}, {2*SLOT}", (), sr(sPlus))
    e.salu(f"s_mov_b32 {S(sMinus)}, {(-8*SLOT) & 0xffffffff}", (), sr(sMinus))
    e.salu(f"s_add_u32 {S(sVdst)}, {S(sW4k)}, {5*SLOT}", sr(sW4k), sr(sVdst))
    e.salu(f"s_add_u32 {S(sKdst)}, {S(sW4k)}, {6*SLOT}", sr(sW4k), sr(sKdst))
    e.salu(f"s_add_u32 {S(sVrd)}, {S(sW4k)}, {1*SLOT}", sr(sW4k), sr(sVrd))
    e.salu(f"s_add_u32 {S(sKrd)}, {S(sW4k)}, {2*SLOT}", sr(sW4k), sr(sKrd))
    e.salu(f"s_add_u32 {S(sVsrc)}, {S(sW4k)}, {2*SLOT}", sr(sW4k), sr(sVsrc))
    e.salu(f"s_add_u32 {S(sKsrc)}, {S(sW4k)}, {3*SLOT}", sr(sW4k), sr(sKsrc))
    e.salu(f"s_mov_b32 {S(sP)}, 0", (), sr(sP))
    for i in range(4): e.valu(f"v_mov_b32 {V(CM+i)}, {f32hex(-float(opts.get('m0', 8)))}", (), vr(CM + i))
    e.valu(f"v_mov_b32 {V(T1)}, 0x3f803f80", (), vr(T1))
    e.valu(f"v_mov_b32 {V(T1+1)}, 0", (), vr(T1 + 1))
    for i in range(4): e.valu(f"v_accvgpr_write_b32 {A(aONE+i)}, {V(T1)}", vr(T1), ar(aONE + i))
    for i in range(20): e.valu(f"v_accvgpr_write_b32 {A(aL+i)}, {V(T1+1)}", vr(T1 + 1), ar(aL + i))
    for i in range(160): e.valu(f"v_mov_b32 {V(OB+i)}, 0", (), vr(OB + i))

    def kread(addr, kb, ks, pool=aK):
        if ab("nods"): return
        d = RA(pool + 16 * kb + 4 * ks, 4)
        e.ds_read(f"ds_read_b128 {d}, {V(addr)} offset:{4096*kb + 256*ks}", d.regs(), vr(addr))
    def vread(addr, db, j, pool=aV):
        if ab("nods"): return
        d = RA(pool + 4 * db + 2 * j, 2)
        e.ds_read(f"ds_read_b64_tr_b16 {d}, {V(addr)} offset:{4096*j + 256*(db>>1) + 8*(db&1)}", d.regs(), vr(addr))
    def xexp(q, kb, i):
        if ab("novalu"): return
        r = SB + 8 * q + 4 * kb + i
        e.trans(f"v_exp_f32 {V(r)}, {V(r)}", vr(r), vr(r))
    def xcvt(first, q, kb, h):
        if ab("novalu"): return
        r = SB + 8 * q + 4 * kb + 2 * h
        d = (PF if first else PS) + 4 * q + 2 * kb + h
        e.valu(f"v_cvt_pk_bf16_f32 {V(d)}, {V(r)}, {V(r+1)}", vr(r, 2), vr(d))

    e.wait_vm(16); e.barrier()
    for kb in range(2):
        for ks in range(4): kread(KA1, kb, ks)
    QT = PS
    def prescale(b):
        for ks in range(4):
            addr, off = (QA, b * SLOT + 256 * ks) if b < 4 else (QA + 1, 256 * ks)
            e.ds_read(f"ds_read_b128 {V(QT+4*ks,4)}, {V(addr)} offset:{off}", vr(QT + 4 * ks, 4), vr(addr))
        for ks in range(4):
            for i in range(0, 4, 2):
                q0, q1 = QT + 4 * ks + i, QT + 4 * ks + i + 1
                a0, a1, b0, b1 = T1, T1 + 1, T1 + 2, T1 + 3
                e.valu(f"v_lshlrev_b32 {V(a0)}, 16, {V(q0)}", vr(q0), vr(a0))
                e.valu(f"v_and_b32 {V(a1)}, {S(sMask)}, {V(q0)}", vr(q0) + sr(sMask), vr(a1))
                e.valu(f"v_lshlrev_b32 {V(b0)}, 16, {V(q1)}", vr(q1), vr(b0))
                e.valu(f"v_and_b32 {V(b1)}, {S(sMask)}, {V(q1)}", vr(q1) + sr(sMask), vr(b1))
                for r in (a0, a1, b0, b1):
                    e.valu(f"v_mul_f32 {V(r)}, {S(sScale)}, {V(r)}", vr(r) + sr(sScale), vr(r))
                e.valu(f"v_cvt_pk_bf16_f32 {V(q0)}, {V(a0)}, {V(a1)}", vr(a0) + vr(a1), vr(q0))
                e.valu(f"v_cvt_pk_bf16_f32 {V(q1)}, {V(b0)}, {V(b1)}", vr(b0) + vr(b1), vr(q1))
                e.valu(f"v_accvgpr_write_b32 {A(aQ+16*b+4*ks+i)}, {V(q0)}", vr(q0), ar(aQ + 16 * b + 4 * ks + i))
                e.valu(f"v_accvgpr_write_b32 {A(aQ+16*b+4*ks+i+1)}, {V(q1)}", vr(q1), ar(aQ + 16 * b + 4 * ks + i + 1))
    def sm_block(first, q):
        for kb in range(2):
            for i in range(4): xexp(q, kb, i)
        for kb in range(2):
            for h in range(2): xcvt(first, q, kb, h)
    after = [lambda: dma4(sQ, 65536, 9 * SLOT, gbase=sXg), lambda: dma4(sV, 0, 1 * SLOT), lambda: dma4(sK, SLOT, 2 * SLOT),
             lambda: dma4(sV, SLOT, 3 * SLOT), lambda: dma4(sK, 2 * SLOT, 4 * SLOT)]
    for b in range(5):
        e.wait_vm(12)
        prescale(b)
        after[b]()
        for kb in range(2):
            for ks in range(4):
                e.mfma16(Sb(b, kb), Kf(kb, ks), Qf(b, ks), C=(RV(CM, 4) if ks == 0 else None))
        if b > 0: sm_block(True, b - 1)
    for kb in range(2):
        for ks in range(4): kread(KA2, kb, ks)
    sm_block(True, 4)
    if smode == "p": stamp(1)
    e.valu(f"v_add_u32 {V(KA1)}, {S(sPlus)}, {V(KA1)}", sr(sPlus) + vr(KA1), vr(KA1))
    e.valu(f"v_add_u32 {V(KA2)}, {S(sPlus)}, {V(KA2)}", sr(sPlus) + vr(KA2), vr(KA2))

    class Sched:
        def __init__(self, n): self.n = n; self.cap = [2] * n; self.items = [[] for _ in range(n)]; self.over = 0
        def place(self, earliest, cost, fn):
            g = max(0, earliest)
            while g < self.n and self.cap[g] < cost: g += 1
            if g >= self.n:
                g = self.n - 1; self.over += cost
            self.cap[g] -= cost; self.items[g].append(fn); return g
        def stream(self, earliest, items):
            g = earliest; out = []
            for it in items:
                if len(it) > 2: g = max(g, it[2])
                g = self.place(g, it[0], it[1]); out.append(g)
            return out
    LAT = opts.get("lat", 3)

    def step(first, kaddr, vaddr, pre=None, extras=(), last=False):
        qa = [0, 1, 2, 3] if first else [0, 1, 2, 3, 4]
        qb = [0, 1, 2, 3, 4] if first else [0, 1, 2, 3]
        nxt_first = not first
        mf = []; done = {}
        for kb in range(2):
            for ks in range(4):
                for q in qa:
                    mf.append(lambda q=q, kb=kb, ks=ks: e.mfma16(Sb(q, kb), Kf(kb, ks), Qf(q, ks), C=(RV(CM, 4) if ks == 0 else None)))
                    if ks == 3: done[(q, kb)] = len(mf) - 1
        nA = len(mf)
        order_b = []
        if last:
            order_b += [('l', 4, 0)] + [('o', 4, db) for db in range(8)]
            order_b += [('l', q, 0) for q in range(4)]
            order_b += [('o', q, db) for db in range(8) for q in range(4)]
        else:
            order_b += [('l', q, 0) for q in qb]
            order_b += [('o', q, db) for db in range(8) for q in qb]
        for (k, q, db) in order_b:
            if k == 'l': mf.append(lambda q=q: e.mfma16(Lb(q), RA(aONE, 4), Pb(first, q)))
            else: mf.append(lambda q=q, db=db: e.mfma16(O(q, db), Vf(aV, db), Pb(first, q)))
        n = len(mf)
        sc = Sched(n)
        eg = {}
        for kb in range(2):
            g = 0
            for q in qa:
                for i in range(4):
                    g = sc.place(max(g, done[(q, kb)] + LAT), 2, lambda q=q, kb=kb, i=i: xexp(q, kb, i)); eg[(q, kb, i)] = g
        sc.stream(0, [(1, lambda db=db, j=j: vread(vaddr, db, j)) for db in range(8) for j in range(2)])
        g = 0
        for kb in range(2):
            for q in qa:
                for h in range(2):
                    g = sc.place(max(g, eg[(q, kb, 2 * h + 1)] + 1), 1, lambda q=q, kb=kb, h=h: xcvt(nxt_first, q, kb, h))
        if last:
            sc.stream(nA, [(1, lambda db=db, j=j: vread(kaddr, db, j, pool=aK)) for db in range(8) for j in range(2)])
        else:
            sc.stream(nA, [(1, lambda kb=kb, ks=ks: kread(kaddr, kb, ks)) for kb in range(2) for ks in range(4)])
        for (earliest, items) in extras(nA, n) if callable(extras) else extras:
            sc.stream(earliest, items)
        if sc.over: sys.stderr.write(f"WARNING: step(first={first}) over capacity by {sc.over}\n")
        for g in range(n):
            if g == 0:
                if pre: pre()
                else: e.wait_lgkm(0)
            if g == nA: e.wait_lgkm(0)
            mf[g]()
            for fn in sc.items[g]: fn()
        return sc

    def adv(r, dl):
        def f():
            e.salu(f"s_cmp_ge_u32 {S(r)}, {8*SLOT}", sr(r), ())
            e.salu(f"s_cselect_b32 {S(dl)}, {S(sMinus)}, {S(sPlus)}", sr(sMinus) + sr(sPlus), sr(dl))
        return [(2, f), (1, lambda: e.salu(f"s_add_u32 {S(r)}, {S(r)}, {S(dl)}", sr(r) + sr(dl), sr(r)))]
    def setm0(dst): return [(1, lambda: e.salu(f"s_mov_b32 m0, {S(dst)}", sr(dst), M0))]
    def dmas(srd, src): return [(2, lambda i=i: dma(srd, src, i)) for i in range(4)]
    def sadd(r, c): return [(1, lambda: e.salu(f"s_add_u32 {S(r)}, {S(r)}, {c}", sr(r), sr(r)))]
    def vadd(r, d): return [(1, lambda: e.valu(f"v_add_u32 {V(r)}, {S(d)}, {V(r)}", sr(d) + vr(r), vr(r)))]

    def pair_pre():
        if opts.get("trace", 0): e.salu("s_memrealtime s[80:81]", (), sr(80, 2))
        if ab("nodma"): e.wait_lgkm(0)
        else:
            e.add(Ins("s_waitcnt vmcnt(8) lgkmcnt(0)", 'wait')); e.dsq = []
        if opts.get("trace", 0):
            e.salu(f"s_mov_b32 m0, {S(sP)}", sr(sP), M0); e.nop(1)
            e.add(Ins(f"v_writelane_b32 v254, s80, m0", 'valu', sr(80), vr(254)))
        if not ab("nobar"): e.barrier()
        if opts.get("trace", 0) == 2:
            e.salu("s_memrealtime s[80:81]", (), sr(80, 2)); e.raw("s_waitcnt lgkmcnt(0)", 'wait')
            e.add(Ins(f"v_writelane_b32 v255, s80, m0", 'valu', sr(80), vr(255)))

    st["inloop"] = True
    q_entry = [set(x) for x in e.dsq]
    if stamps: e.salu("s_memtime s[76:77]", (), sr(76, 2))
    pstamp(2)
    loop_start = len(e.out)
    e.label("L_loop")
    def ex1(nA, n):
        return [(nA + 2, setm0(sVdst) + sadd(sVsrc, 0)[:0] + dmas(sV, sVsrc) + sadd(sVsrc, SLOT) + adv(sVdst, sA)),
                (nA + 2, adv(sVrd, sDV) + vadd(VA1, sDV)),
                ]
    def ex2(nA, n):
        return [(2, setm0(sKdst) + dmas(sK, sKsrc) + sadd(sKsrc, SLOT) + adv(sKdst, sA)),
                (2, adv(sKrd, sDK) + vadd(KA1, sDK)),
                (nA - 2, vadd(VA2, sDV)),
                ]
    step(True, KA1, VA1, pre=pair_pre, extras=ex1)
    step(False, KA2, VA2, extras=ex2)
    e.valu(f"v_add_u32 {V(KA2)}, {S(sDK)}, {V(KA2)}", sr(sDK) + vr(KA2), vr(KA2))
    e.salu(f"s_add_u32 {S(sP)}, {S(sP)}, 1", sr(sP), sr(sP))
    e.salu(f"s_cmp_lt_u32 {S(sP)}, 7", sr(sP), ())
    e.branch("s_cbranch_scc1 L_loop")
    loop_end = len(e.out)
    if "nods" not in abl: assert [set(x) for x in e.dsq] == q_entry, (e.dsq, q_entry)
    body = e.out[loop_start:loop_end]
    bad = e.check_seq(body + body, "loop"); assert not bad, bad
    st["inloop"] = False
    if stamps: e.salu("s_memtime s[78:79]", (), sr(78, 2))
    pstamp(3); tstamp(1)

    if opts.get("trace", 0):
        e.valu("v_mov_b32 v11, v254", vr(254), vr(11)) if False else None
    XB = 6 * SLOT
    XW = T0
    def last_pre():
        e.add(Ins("s_waitcnt vmcnt(0) lgkmcnt(0)", 'wait')); e.dsq = []
        e.barrier()
    def ex_last(nA, n):
        it = []
        def addr():
            e.salu(f"s_mul_i32 {S(sA)}, {S(sW)}, 9216", sr(sW), sr(sA))
            e.salu(f"s_xor_b32 {S(sB)}, {S(sW)}, 1", sr(sW), sr(sB))
            e.salu(f"s_mul_i32 {S(sB)}, {S(sB)}, 9216", sr(sB), sr(sB))
            e.salu(f"s_add_u32 {S(sA)}, {S(sA)}, {XB}", sr(sA), sr(sA))
            e.salu(f"s_add_u32 {S(sB)}, {S(sB)}, {XB}", sr(sB), sr(sB))
        def addr2():
            e.valu(f"v_lshl_add_u32 {V(XW)}, v0, 4, {S(sA)}", vr(0) + sr(sA), vr(XW))
            e.valu(f"v_lshl_add_u32 {V(XW+1)}, v0, 4, {S(sB)}", vr(0) + sr(sB), vr(XW + 1))
        it.append((4, [(2, addr), (2, addr2)]))
        w = [(2, lambda db=db: e.ds_write(f"ds_write_b128 {V(XW)}, {O(4, db)} offset:{1024*db}", vr(XW) + O(4, db).regs())) for db in range(8)]
        w.append((1, lambda: e.ds_write(f"ds_write_b32 {V(XW)}, {A(aL+16)} offset:8192", vr(XW) + ar(aL + 16))))
        it.append((nA + 9 + 4, w))
        return it
    step(True, VA2, VA1, pre=last_pre, extras=ex_last, last=True)
    pstamp(4); tstamp(2)
    e.wait_lgkm(0); e.barrier()
    tstamp(3)
    XT = SB
    for db in range(8):
        e.ds_read(f"ds_read_b128 {V(XT+4*db,4)}, {V(XW+1)} offset:{1024*db}", vr(XT + 4 * db, 4), vr(XW + 1))
    e.ds_read(f"ds_read_b32 {V(XT+32)}, {V(XW+1)} offset:8192", vr(XT + 32), vr(XW + 1))
    e.salu(f"s_mov_b32 {S(sLo)}, {f32hex(2.0**opts.get('lo', -10))}", (), sr(sLo))
    e.salu(f"s_mov_b32 {S(sHi)}, {f32hex(512.0)}", (), sr(sHi))
    for q in range(4): e.mfma16(Lb(q), RA(aONE, 4), Pb(False, q))
    WA0, WA1, RA0, RA1, GV = KA1, KA2, VA1, VA2, VD
    u1, u2, u3 = VD + 1, VD + 2, VD + 3
    e.salu(f"s_mul_i32 {S(sA)}, {S(sW)}, {5*4096}", sr(sW), sr(sA))
    e.valu(f"v_and_b32 {V(u1)}, 15, v0", vr(0), vr(u1))
    e.valu(f"v_lshrrev_b32 {V(u2)}, 4, v0", vr(0), vr(u2))
    e.valu(f"v_and_b32 {V(u3)}, 7, v0", vr(0), vr(u3))
    e.valu(f"v_xor_b32 {V(u3)}, {V(u3)}, {V(u2)}", vr(u3) + vr(u2), vr(u3))
    e.valu(f"v_lshlrev_b32 {V(u3)}, 4, {V(u3)}", vr(u3), vr(u3))
    e.valu(f"v_lshl_add_u32 {V(u3)}, {V(u1)}, 8, {V(u3)}", vr(u1) + vr(u3), vr(u3))
    e.valu(f"v_add_u32 {V(WA0)}, {S(sA)}, {V(u3)}", sr(sA) + vr(u3), vr(WA0))
    e.valu(f"v_xor_b32 {V(WA1)}, 64, {V(WA0)}", vr(WA0), vr(WA1))
    e.valu(f"v_xor_b32 {V(u3)}, {V(u1)}, {V(u2)}", vr(u1) + vr(u2), vr(u3))
    e.valu(f"v_lshlrev_b32 {V(u3)}, 4, {V(u3)}", vr(u3), vr(u3))
    e.valu(f"v_lshl_add_u32 {V(u3)}, {V(u2)}, 8, {V(u3)}", vr(u2) + vr(u3), vr(u3))
    e.valu(f"v_add_u32 {V(RA0)}, {S(sA)}, {V(u3)}", sr(sA) + vr(u3), vr(RA0))
    e.valu(f"v_xor_b32 {V(RA1)}, 64, {V(RA0)}", vr(RA0), vr(RA1))
    e.valu(f"v_lshlrev_b32 {V(GV)}, 4, v0", vr(0), vr(GV))
    e.salu(f"s_lshl_b32 {S(sC)}, {S(sW)}, 14", sr(sW), sr(sC))
    RC = PF
    def lcheck(rc, bad, firstc):
        e.valu(f"v_med3_f32 {V(T1)}, {V(rc)}, {S(sLo)}, {V(T1+1)}", vr(rc) + sr(sLo) + vr(T1 + 1), vr(T1))
        e.valu(f"v_cmp_neq_f32 vcc, {V(T1)}, {V(rc)}", vr(T1) + vr(rc), VCC)
        if firstc: e.salu(f"s_mov_b64 {S(bad,2)}, vcc", VCC, sr(bad, 2))
        else: e.salu(f"s_or_b64 {S(bad,2)}, {S(bad,2)}, vcc", VCC + sr(bad, 2), sr(bad, 2))
    e.valu(f"v_mov_b32 {V(T1+1)}, {S(sHi)}", sr(sHi), vr(T1 + 1))
    PK = opts.get("pk", 0)
    def fin_ops(q, rc):
        ops = []
        for k in range(4):
            tt = PF + 8 + 4 * (k % 3)
            for b in range(2):
                o = O(q, 2 * k + b).base
                if PK:
                    for h in range(2):
                        ops.append(lambda o=o, h=h: e.valu(f"v_pk_mul_f32 {V(o+2*h,2)}, {V(o+2*h,2)}, {V(rc,2)} op_sel_hi:[1,0]", vr(o + 2 * h, 2) + vr(rc), vr(o + 2 * h, 2)))
                else:
                    for i in range(4):
                        ops.append(lambda o=o, i=i: e.valu(f"v_mul_f32 {V(o+i)}, {V(o+i)}, {V(rc)}", vr(o + i) + vr(rc), vr(o + i)))
                for h in range(2):
                    ops.append(lambda o=o, h=h, b=b, tt=tt: e.valu(f"v_cvt_pk_bf16_f32 {V(tt+2*b+h)}, {V(o+2*h)}, {V(o+2*h+1)}", vr(o + 2 * h, 2), vr(tt + 2 * b + h)))
            wa = WA0 if k % 2 == 0 else WA1
            ops.append(lambda k=k, tt=tt, wa=wa: e.ds_write(f"ds_write_b128 {V(wa)}, {V(tt,4)} offset:{q*4096 + 128*(k>>1)}", vr(wa) + vr(tt, 4)))
        return ops
    def rd_ops(q, rows=range(4), ra=None):
        ops = []
        for i in rows:
            r = (ra or (RA0, RA1))[i % 2]
            d = O(q, 0).base + 4 * i
            ops.append(lambda i=i, r=r, d=d: e.ds_read(f"ds_read_b128 {V(d,4)}, {V(r)} offset:{q*4096 + 1024*i}", vr(d, 4), vr(r)))
        return ops
    def st_ops(q, soff, rows=range(4), gv=GV):
        ops = []
        for i in rows:
            d = O(q, 0).base + 4 * i
            ops.append(lambda i=i, d=d: e.vstore(f"buffer_store_dwordx4 {V(d,4)}, {V(gv)}, {S(sO,4)}, {S(soff)} offen offset:{1024*i} {STF}", vr(d, 4) + vr(gv) + sr(sO, 4) + sr(soff)))
        return ops
    def run(ops):
        for o in ops: o()
    def inter(mfs, ops, per=2):
        k = 0
        for m in mfs:
            m()
            for _ in range(per):
                if k < len(ops): ops[k](); k += 1
        run(ops[k:])
    def blk(q): return [lambda db=db: e.mfma16(O(q, db), Vf(aK, db), Pb(False, q)) for db in range(8)]
    pre = []
    for qq in range(5):
        pre.append(lambda qq=qq: e.valu(f"v_accvgpr_read_b32 {V(RC+qq)}, {A(aL+4*qq)}", ar(aL + 4 * qq), vr(RC + qq)))
        if qq == 4: pre.append(lambda: e.valu(f"v_add_f32 {V(RC+4)}, {V(RC+4)}, {V(XT+32)}", vr(RC + 4) + vr(XT + 32), vr(RC + 4)))
        pre.append(lambda qq=qq: lcheck(RC + qq, sBad if qq < 4 else sBadX, qq in (0, 4)))
        pre.append(lambda qq=qq: e.trans(f"v_rcp_f32 {V(RC+qq)}, {V(RC+qq)}", vr(RC + qq), vr(RC + qq)))
    xadd = [lambda i=i: e.valu(f"v_add_f32 {V(OB+128+i)}, {V(OB+128+i)}, {V(XT+i)}", vr(OB + 128 + i) + vr(XT + i), vr(OB + 128 + i)) for i in range(32)]
    inter(blk(0), xadd)
    run(pre)
    XR0, XR1, XG = XW, XW + 1, T1 + 2
    def xaddr():
        e.salu(f"s_lshl_b32 {S(sA)}, {S(sPar)}, 11", sr(sPar), sr(sA))
        e.valu(f"v_add_u32 {V(XR0)}, {S(sA)}, {V(RA0)}", sr(sA) + vr(RA0), vr(XR0))
        e.valu(f"v_add_u32 {V(XR1)}, {S(sA)}, {V(RA1)}", sr(sA) + vr(RA1), vr(XR1))
        e.salu(f"s_add_u32 {S(sB)}, {S(sXg)}, {S(sA)}", sr(sXg) + sr(sA), sr(sB))
        e.salu(f"s_add_u32 {S(sB)}, {S(sB)}, 65536", sr(sB), sr(sB))
    inter(blk(1), fin_ops(4, RC + 4))
    xaddr()
    run(rd_ops(4, rows=range(2), ra=(XR0, XR1)))
    tstamp(4)
    inter(blk(2), fin_ops(0, RC + 0))
    e.salu(f"s_cmp_lg_u64 {S(sBadX,2)}, 0", sr(sBadX, 2), ())
    e.branch("s_cbranch_scc1 L_xskip")
    run(st_ops(4, sB, rows=range(2)))
    e.label("L_xret")
    run(rd_ops(0))
    inter(blk(3), fin_ops(1, RC + 1))
    run(st_ops(0, sC)); run(rd_ops(1))
    e.salu(f"s_add_u32 {S(sA)}, {S(sC)}, 4096", sr(sC), sr(sA))
    run(fin_ops(2, RC + 2))
    run(st_ops(1, sA)); run(rd_ops(2))
    e.salu(f"s_add_u32 {S(sB)}, {S(sC)}, 8192", sr(sC), sr(sB))
    stamp(5)
    run(fin_ops(3, RC + 3))
    run(st_ops(2, sB)); run(rd_ops(3))
    e.salu(f"s_add_u32 {S(sA)}, {S(sC)}, 12288", sr(sC), sr(sA))
    run(st_ops(3, sA))
    if stamps:
        e.wait_vm(0); stamp(6)
        e.raw("s_waitcnt lgkmcnt(0)", 'wait')
        e.salu(f"s_cmp_lg_u32 {S(sW)}, 0"); e.branch("s_cbranch_scc1 L_end")
        T = SB
        for i in range(14): e.valu(f"v_mov_b32 {V(T+i)}, {S(60+i)}", sr(60 + i), vr(T + i))
        e.salu("s_sub_u32 s78, s78, s76")
        e.valu(f"v_mov_b32 {V(T+14)}, s78", (), vr(T + 14)); e.valu(f"v_mov_b32 {V(T+15)}, 0", (), vr(T + 15))
        e.salu("s_lshl_b32 s57, s2, 6"); e.salu("s_add_u32 s58, s58, s57"); e.salu("s_addc_u32 s59, s59, 0")
        e.valu(f"v_mov_b32 {V(T+16)}, 0", (), vr(T + 16))
        e.valu("v_cmp_eq_u32 vcc, 0, v0", vr(0), VCC)
        e.salu("s_and_saveexec_b64 s[56:57], vcc", VCC)
        for i in range(4):
            e.vstore(f"global_store_dwordx4 {V(T+16)}, {V(T+4*i,4)}, s[58:59] offset:{16*i}", vr(T + 16) + vr(T + 4 * i, 4) + sr(58, 2))
        if opts.get("trace", 0):
            e.salu("s_mov_b64 exec, -1")
            e.valu("v_cmp_gt_u32 vcc, 8, v0", vr(0), VCC)
            e.salu("s_and_saveexec_b64 s[56:57], vcc", VCC)
            e.valu(f"v_lshlrev_b32 {V(T+16)}, 2, v0", vr(0), vr(T + 16))
            e.valu(f"v_add_u32 {V(T+16)}, 16384, {V(T+16)}", vr(T + 16), vr(T + 16))
            e.vstore(f"global_store_dword {V(T+16)}, v254, s[58:59]", vr(T + 16) + vr(254) + sr(58, 2))
            e.vstore(f"global_store_dword {V(T+16)}, v255, s[58:59] offset:32", vr(T + 16) + vr(255) + sr(58, 2))
    if not stamps:
        slow_path(e, sQ, sK, sV, sO, sW, sPar, sBad, sBadX)
    e.label("L_end"); e.raw("s_endpgm")
    e.label("L_xskip"); e.raw("s_waitcnt lgkmcnt(0)", 'wait'); e.nop(2); e.branch("s_branch L_xret")
    e.raw("s_endpgm")
    sys.stderr.write(f"auto nops: {e.nops}; instrs {len(e.out)}; loop instrs {loop_end-loop_start}\n")
    for x in e.auto_nop_log: sys.stderr.write(f"  nop {x} {'LOOP' if loop_start <= x[0] < loop_end else ''}\n")
    sys.stderr.write(f"auto waits: {[(x, 'L' if loop_start <= x[0] < loop_end else '') for x in e.auto_wait_log]}\n")
    return e.text()

HEAD = f"""; GQA softmax attention (generated)
; @launch grid=(256,1,1) block=(256,1,1) lds=163840
.amdgcn_target "amdgcn-amd-amdhsa--gfx950"
.text
.globl {KN}
.p2align 8
.type {KN},@function
{KN}:
"""
TAIL = f"""
.section .rodata,"a"
.p2align 6
.amdhsa_kernel {KN}
  .amdhsa_next_free_vgpr 424
  .amdhsa_next_free_sgpr 102
  .amdhsa_accum_offset 256
  .amdhsa_group_segment_fixed_size 0
  .amdhsa_kernarg_size 48
  .amdhsa_user_sgpr_count 2
  .amdhsa_user_sgpr_kernarg_segment_ptr 1
  .amdhsa_system_sgpr_workgroup_id_x 1
.end_amdhsa_kernel
"""
if __name__ == "__main__":
    opts = {}
    for a in sys.argv[1:]:
        k, v = a.split("="); opts[k] = int(v) if v.lstrip("-").isdigit() else v
    import head
    sys.stdout.write(head.head() + gen(opts) + head.tail(424))
```

```python
import sys, struct
from emit3 import *
from slow import slow_path

def f32hex(x): return "0x%08x" % struct.unpack("<I", struct.pack("<f", x))[0]
CSCALE = 0.08838834764831845 * 1.4426950408889634
SLOT = 16384; UNIT = 8192
KN = "standalone__gqa_softmax__near_ridge_kernel"

KA1, KA2, VA1, VA2 = 1, 2, 3, 4
VD = 5
VS = 9
T0 = 10
CM = 12
OB = 16
SB = 176
PF = 216
PS = 236
T1 = 252
aQ = 0
aK = 80
aV = 112
aL = 144
aONE = 164
sQ, sK, sV, sO = 12, 16, 20, 24
sW = 30; sP = 31
sKdst, sVdst, sDK, sDV, sKsrc, sVsrc = 32, 33, 34, 35, 36, 37
sPlus, sMinus = 40, 41
sVrd, sKrd = 38, 39
sA, sB, sC = 42, 43, 44
sW4k, sPar, sMask, sScale = 45, 46, 47, 48
sBad, sBadX = 50, 52
sLo, sHi = 54, 55
sT = 56

def O(q, db): return RV(OB + 32 * q + 4 * db, 4)
def Sb(q, kb): return RV(SB + 8 * q + 4 * kb, 4)
def Pb(first, q): return RV((PF if first else PS) + 4 * q, 4)
def Qf(q, ks): return RA(aQ + 16 * q + 4 * ks, 4)
def Kf(kb, ks): return RA(aK + 16 * kb + 4 * ks, 4)
def Vf(pool, db): return RA(pool + 4 * db, 4)
def Lb(q): return RA(aL + 4 * q, 4)

def gen(opts):
    e = Emitter()
    stamps = opts.get("stamps", 0)
    LDF = opts.get("ldflags", "nt"); STF = opts.get("stflags", "nt").replace("_", " ")
    abl = set(str(opts.get("abl", "")).split(","))
    st = {"inloop": False}
    def ab(x): return st["inloop"] and x in abl
    def stamp(idx):
        if stamps: e.salu(f"s_memrealtime {S(60+2*idx,2)}", (), sr(60 + 2 * idx, 2))
    smode = opts.get("smode", "p")
    def pstamp(i):
        if smode == "p": stamp(i)
    def tstamp(i):
        if smode == "t": stamp(i)
    def dma(srd, soff, i):
        if ab("nodma"): return
        off = f" offset:{1024*i}" if i else ""
        e.dma(f"buffer_load_dwordx4 {V(VD+i)}, {S(srd,4)}, {S(soff)} offen{off} {LDF} lds", vr(VD + i) + sr(srd, 4) + sr(soff))
    def dma4(srd, gconst, ldsconst, gbase=sW4k):
        e.salu(f"s_add_u32 {S(sA)}, {S(gbase)}, {gconst}", sr(gbase), sr(sA))
        e.salu(f"s_add_u32 m0, {S(sW4k)}, {ldsconst}", sr(sW4k), M0)
        for i in range(4): dma(srd, sA, i)

    stamp(0)
    e.salu("s_cmp_ge_u32 s2, 256"); e.branch("s_cbranch_scc1 L_end")
    e.salu("s_load_dwordx4 s[4:7], s[0:1], 0", (), sr(4, 4))
    e.salu("s_load_dwordx4 s[8:11], s[0:1], 16", (), sr(8, 4))
    if stamps: e.salu("s_load_dwordx2 s[58:59], s[0:1], 40", (), sr(58, 2))
    ln, t1, t2, t3, t4 = SB, SB + 1, SB + 2, SB + 3, SB + 4
    e.valu(f"v_lshrrev_b32 {V(t1)}, 6, v0", vr(0), vr(t1))
    e.valu(f"v_and_b32 v0, 63, v0", vr(0), vr(0))
    e.readlane(f"v_readfirstlane_b32 {S(sW)}, {V(t1)}", vr(t1), sr(sW))
    e.valu(f"v_bfe_u32 {V(t1)}, v0, 2, 2", vr(0), vr(t1))
    e.valu(f"v_lshrrev_b32 {V(t2)}, 4, v0", vr(0), vr(t2))
    e.valu(f"v_and_b32 {V(t3)}, 3, v0", vr(0), vr(t3))
    e.valu(f"v_lshlrev_b32 {V(t4)}, 8, {V(t1)}", vr(t1), vr(t4))
    e.valu(f"v_lshl_add_u32 {V(t4)}, {V(t2)}, 6, {V(t4)}", vr(t2) + vr(t4), vr(t4))
    e.valu(f"v_lshl_add_u32 {V(VD)}, {V(t3)}, 4, {V(t4)}", vr(t3) + vr(t4), vr(VD))
    for i in range(1, 4):
        e.valu(f"v_xor_b32 {V(VD+i)}, {((-i) & 3) << 4}, {V(VD)}", vr(VD), vr(VD + i))
    e.salu("s_mul_i32 s28, s2, 73728", (), sr(28)); e.salu("s_lshl_b32 s29, s2, 17", (), sr(29))
    e.salu(f"s_lshl_b32 {S(sW4k)}, {S(sW)}, 12", sr(sW), sr(sW4k))
    e.raw("s_waitcnt lgkmcnt(0)", 'wait')
    for (srd, ptr, off, size) in ((sK, 6, 29, 131072), (sQ, 4, 28, 73728), (sV, 8, 29, 131072), (sO, 10, 28, 73728)):
        e.salu(f"s_add_u32 {S(srd)}, {S(ptr)}, {S(off)}", (), sr(srd))
        e.salu(f"s_addc_u32 {S(srd+1)}, {S(ptr+1)}, 0", (), sr(srd + 1))
        e.salu(f"s_mov_b32 {S(srd+2)}, {size}", (), sr(srd + 2))
        e.salu(f"s_mov_b32 {S(srd+3)}, 0x20000", (), sr(srd + 3))
        if srd == sK: dma4(sK, 0, 0)
    e.salu(f"s_lshl_b32 {S(sB)}, {S(sW)}, 14", sr(sW), sr(sB))
    for b in range(4): dma4(sQ, b * 4096, (5 + b) * SLOT, gbase=sB)
    sXg = 49
    e.salu(f"s_lshr_b32 {S(sXg)}, {S(sW)}, 1", sr(sW), sr(sXg))
    e.salu(f"s_lshl_b32 {S(sXg)}, {S(sXg)}, 12", sr(sXg), sr(sXg))
    e.salu(f"s_and_b32 {S(sPar)}, {S(sW)}, 1", sr(sW), sr(sPar))
    e.salu(f"s_lshl_b32 {S(sA)}, {S(sPar)}, 13", sr(sPar), sr(sA))
    e.salu(f"s_xor_b32 {S(sB)}, {S(sA)}, {UNIT}", sr(sA), sr(sB))
    e.valu(f"v_sub_u32 {V(t4)}, 0, {V(t2)}", vr(t2), vr(t4))
    e.valu(f"v_and_b32 {V(t4)}, 3, {V(t4)}", vr(t4), vr(t4))
    e.valu(f"v_xor_b32 {V(t4)}, {V(t4)}, {V(t3)}", vr(t4) + vr(t3), vr(t4))
    e.valu(f"v_lshlrev_b32 {V(t4)}, 4, {V(t4)}", vr(t4), vr(t4))
    e.valu(f"v_lshl_add_u32 {V(t4)}, {V(t1)}, 6, {V(t4)}", vr(t1) + vr(t4), vr(t4))
    e.valu(f"v_lshl_add_u32 {V(t4)}, {V(t2)}, 10, {V(t4)}", vr(t2) + vr(t4), vr(t4))
    e.valu(f"v_add_u32 {V(t4)}, {SLOT}, {V(t4)}", vr(t4), vr(t4))
    e.valu(f"v_add_u32 {V(VA1)}, {S(sA)}, {V(t4)}", sr(sA) + vr(t4), vr(VA1))
    e.valu(f"v_add_u32 {V(VA2)}, {S(sB)}, {V(t4)}", sr(sB) + vr(t4), vr(VA2))
    e.valu(f"v_sub_u32 {V(t4)}, 0, {V(t1)}", vr(t1), vr(t4))
    e.valu(f"v_and_b32 {V(t4)}, 3, {V(t4)}", vr(t4), vr(t4))
    e.valu(f"v_xor_b32 {V(t4)}, {V(t4)}, {V(t2)}", vr(t4) + vr(t2), vr(t4))
    e.valu(f"v_lshlrev_b32 {V(t4)}, 4, {V(t4)}", vr(t4), vr(t4))
    e.valu(f"v_lshl_add_u32 {V(t4)}, {V(t3)}, 6, {V(t4)}", vr(t3) + vr(t4), vr(t4))
    e.valu(f"v_lshl_add_u32 {V(t4)}, {V(t1)}, 10, {V(t4)}", vr(t1) + vr(t4), vr(t4))
    e.valu(f"v_add_u32 {V(KA1)}, {S(sA)}, {V(t4)}", sr(sA) + vr(t4), vr(KA1))
    e.valu(f"v_add_u32 {V(KA2)}, {S(sB)}, {V(t4)}", sr(sB) + vr(t4), vr(KA2))
    QA = T0
    e.salu(f"s_add_u32 {S(sC)}, {S(sW4k)}, {5*SLOT}", sr(sW4k), sr(sC))
    e.valu(f"v_add_u32 {V(QA)}, {S(sC)}, {V(t4)}", sr(sC) + vr(t4), vr(QA))
    e.valu(f"v_add_u32 {V(QA+1)}, {4*SLOT}, {V(QA)}", vr(QA), vr(QA + 1))
    e.valu(f"v_and_b32 {V(t4)}, 15, v0", vr(0), vr(t4))
    e.valu(f"v_lshlrev_b32 {V(t4)}, 8, {V(t4)}", vr(t4), vr(t4))
    e.valu(f"v_lshl_add_u32 {V(VS)}, {V(t2)}, 4, {V(t4)}", vr(t2) + vr(t4), vr(VS))
    e.salu(f"s_mov_b32 {S(sMask)}, 0xffff0000", (), sr(sMask))
    e.salu(f"s_mov_b32 {S(sScale)}, {f32hex(CSCALE)}", (), sr(sScale))
    e.salu(f"s_mov_b32 {S(sPlus)}, {2*SLOT}", (), sr(sPlus))
    e.salu(f"s_mov_b32 {S(sMinus)}, {(-8*SLOT) & 0xffffffff}", (), sr(sMinus))
    e.salu(f"s_add_u32 {S(sVdst)}, {S(sW4k)}, {5*SLOT}", sr(sW4k), sr(sVdst))
    e.salu(f"s_add_u32 {S(sKdst)}, {S(sW4k)}, {6*SLOT}", sr(sW4k), sr(sKdst))
    e.salu(f"s_add_u32 {S(sVrd)}, {S(sW4k)}, {1*SLOT}", sr(sW4k), sr(sVrd))
    e.salu(f"s_add_u32 {S(sKrd)}, {S(sW4k)}, {2*SLOT}", sr(sW4k), sr(sKrd))
    e.salu(f"s_add_u32 {S(sVsrc)}, {S(sW4k)}, {2*SLOT}", sr(sW4k), sr(sVsrc))
    e.salu(f"s_add_u32 {S(sKsrc)}, {S(sW4k)}, {3*SLOT}", sr(sW4k), sr(sKsrc))
    e.salu(f"s_mov_b32 {S(sP)}, 0", (), sr(sP))
    for i in range(4): e.valu(f"v_mov_b32 {V(CM+i)}, {f32hex(-float(opts.get('m0', 8)))}", (), vr(CM + i))
    e.valu(f"v_mov_b32 {V(T1)}, 0x3f803f80", (), vr(T1))
    e.valu(f"v_mov_b32 {V(T1+1)}, 0", (), vr(T1 + 1))
    for i in range(4): e.valu(f"v_accvgpr_write_b32 {A(aONE+i)}, {V(T1)}", vr(T1), ar(aONE + i))
    for i in range(20): e.valu(f"v_accvgpr_write_b32 {A(aL+i)}, {V(T1+1)}", vr(T1 + 1), ar(aL + i))
    for i in range(160): e.valu(f"v_mov_b32 {V(OB+i)}, 0", (), vr(OB + i))

    def kread(addr, kb, ks, pool=aK):
        if ab("nods"): return
        d = RA(pool + 16 * kb + 4 * ks, 4)
        e.ds_read(f"ds_read_b128 {d}, {V(addr)} offset:{4096*kb + 256*ks}", d.regs(), vr(addr))
    def vread(addr, db, j, pool=aV):
        if ab("nods"): return
        d = RA(pool + 4 * db + 2 * j, 2)
        e.ds_read(f"ds_read_b64_tr_b16 {d}, {V(addr)} offset:{4096*j + 256*(db>>1) + 8*(db&1)}", d.regs(), vr(addr))
    def xexp(q, kb, i):
        if ab("novalu"): return
        r = SB + 8 * q + 4 * kb + i
        e.trans(f"v_exp_f32 {V(r)}, {V(r)}", vr(r), vr(r))
    def xcvt(first, q, kb, h):
        if ab("novalu"): return
        r = SB + 8 * q + 4 * kb + 2 * h
        d = (PF if first else PS) + 4 * q + 2 * kb + h
        e.valu(f"v_cvt_pk_bf16_f32 {V(d)}, {V(r)}, {V(r+1)}", vr(r, 2), vr(d))

    e.wait_vm(16); e.barrier()
    for kb in range(2):
        for ks in range(4): kread(KA1, kb, ks)
    QT = PS
    def prescale(b):
        for ks in range(4):
            addr, off = (QA, b * SLOT + 256 * ks) if b < 4 else (QA + 1, 256 * ks)
            e.ds_read(f"ds_read_b128 {V(QT+4*ks,4)}, {V(addr)} offset:{off}", vr(QT + 4 * ks, 4), vr(addr))
        for ks in range(4):
            for i in range(0, 4, 2):
                q0, q1 = QT + 4 * ks + i, QT + 4 * ks + i + 1
                a0, a1, b0, b1 = T1, T1 + 1, T1 + 2, T1 + 3
                e.valu(f"v_lshlrev_b32 {V(a0)}, 16, {V(q0)}", vr(q0), vr(a0))
                e.valu(f"v_and_b32 {V(a1)}, {S(sMask)}, {V(q0)}", vr(q0) + sr(sMask), vr(a1))
                e.valu(f"v_lshlrev_b32 {V(b0)}, 16, {V(q1)}", vr(q1), vr(b0))
                e.valu(f"v_and_b32 {V(b1)}, {S(sMask)}, {V(q1)}", vr(q1) + sr(sMask), vr(b1))
                for r in (a0, a1, b0, b1):
                    e.valu(f"v_mul_f32 {V(r)}, {S(sScale)}, {V(r)}", vr(r) + sr(sScale), vr(r))
                e.valu(f"v_cvt_pk_bf16_f32 {V(q0)}, {V(a0)}, {V(a1)}", vr(a0) + vr(a1), vr(q0))
                e.valu(f"v_cvt_pk_bf16_f32 {V(q1)}, {V(b0)}, {V(b1)}", vr(b0) + vr(b1), vr(q1))
                e.valu(f"v_accvgpr_write_b32 {A(aQ+16*b+4*ks+i)}, {V(q0)}", vr(q0), ar(aQ + 16 * b + 4 * ks + i))
                e.valu(f"v_accvgpr_write_b32 {A(aQ+16*b+4*ks+i+1)}, {V(q1)}", vr(q1), ar(aQ + 16 * b + 4 * ks + i + 1))
    def sm_block(first, q):
        for kb in range(2):
            for i in range(4): xexp(q, kb, i)
        for kb in range(2):
            for h in range(2): xcvt(first, q, kb, h)
    after = [lambda: dma4(sQ, 65536, 9 * SLOT, gbase=sXg), lambda: dma4(sV, 0, 1 * SLOT), lambda: dma4(sK, SLOT, 2 * SLOT),
             lambda: dma4(sV, SLOT, 3 * SLOT), lambda: dma4(sK, 2 * SLOT, 4 * SLOT)]
    for b in range(5):
        e.wait_vm(12)
        prescale(b)
        after[b]()
        for kb in range(2):
            for ks in range(4):
                e.mfma16(Sb(b, kb), Kf(kb, ks), Qf(b, ks), C=(RV(CM, 4) if ks == 0 else None))
        if b > 0: sm_block(True, b - 1)
    for kb in range(2):
        for ks in range(4): kread(KA2, kb, ks)
    sm_block(True, 4)
    if smode == "p": stamp(1)
    e.valu(f"v_add_u32 {V(KA1)}, {S(sPlus)}, {V(KA1)}", sr(sPlus) + vr(KA1), vr(KA1))
    e.valu(f"v_add_u32 {V(KA2)}, {S(sPlus)}, {V(KA2)}", sr(sPlus) + vr(KA2), vr(KA2))

    class Sched:
        def __init__(self, n): self.n = n; self.cap = [2] * n; self.items = [[] for _ in range(n)]; self.over = 0
        def place(self, earliest, cost, fn):
            g = max(0, earliest)
            while g < self.n and self.cap[g] < cost: g += 1
            if g >= self.n:
                g = self.n - 1; self.over += cost
            self.cap[g] -= cost; self.items[g].append(fn); return g
        def stream(self, earliest, items):
            g = earliest; out = []
            for it in items:
                if len(it) > 2: g = max(g, it[2])
                g = self.place(g, it[0], it[1]); out.append(g)
            return out
    LAT = opts.get("lat", 3)

    def step(first, kaddr, vaddr, pre=None, extras=(), last=False):
        qa = [0, 1, 2, 3] if first else [0, 1, 2, 3, 4]
        qb = [0, 1, 2, 3, 4] if first else [0, 1, 2, 3]
        nxt_first = not first
        mf = []; done = {}
        for kb in range(2):
            for ks in range(4):
                for q in qa:
                    mf.append(lambda q=q, kb=kb, ks=ks: e.mfma16(Sb(q, kb), Kf(kb, ks), Qf(q, ks), C=(RV(CM, 4) if ks == 0 else None)))
                    if ks == 3: done[(q, kb)] = len(mf) - 1
        nA = len(mf)
        order_b = []
        if last:
            order_b += [('l', 4, 0)] + [('o', 4, db) for db in range(8)]
            order_b += [('l', q, 0) for q in range(4)]
            order_b += [('o', q, db) for db in range(8) for q in range(4)]
        else:
            order_b += [('l', q, 0) for q in qb]
            order_b += [('o', q, db) for db in range(8) for q in qb]
        for (k, q, db) in order_b:
            if k == 'l': mf.append(lambda q=q: e.mfma16(Lb(q), RA(aONE, 4), Pb(first, q)))
            else: mf.append(lambda q=q, db=db: e.mfma16(O(q, db), Vf(aV, db), Pb(first, q)))
        n = len(mf)
        sc = Sched(n)
        eg = {}
        for kb in range(2):
            g = 0
            for q in qa:
                for i in range(4):
                    g = sc.place(max(g, done[(q, kb)] + LAT), 2, lambda q=q, kb=kb, i=i: xexp(q, kb, i)); eg[(q, kb, i)] = g
        sc.stream(0, [(1, lambda db=db, j=j: vread(vaddr, db, j)) for db in range(8) for j in range(2)])
        g = 0
        for kb in range(2):
            for q in qa:
                for h in range(2):
                    g = sc.place(max(g, eg[(q, kb, 2 * h + 1)] + 1), 1, lambda q=q, kb=kb, h=h: xcvt(nxt_first, q, kb, h))
        if last:
            sc.stream(nA, [(1, lambda db=db, j=j: vread(kaddr, db, j, pool=aK)) for db in range(8) for j in range(2)])
        else:
            sc.stream(nA, [(1, lambda kb=kb, ks=ks: kread(kaddr, kb, ks)) for kb in range(2) for ks in range(4)])
        for (earliest, items) in extras(nA, n) if callable(extras) else extras:
            sc.stream(earliest, items)
        if sc.over: sys.stderr.write(f"WARNING: step(first={first}) over capacity by {sc.over}\n")
        for g in range(n):
            if g == 0:
                if pre: pre()
                else: e.wait_lgkm(0)
            if g == nA: e.wait_lgkm(0)
            mf[g]()
            for fn in sc.items[g]: fn()
        return sc

    def adv(r, dl):
        def f():
            e.salu(f"s_cmp_ge_u32 {S(r)}, {8*SLOT}", sr(r), ())
            e.salu(f"s_cselect_b32 {S(dl)}, {S(sMinus)}, {S(sPlus)}", sr(sMinus) + sr(sPlus), sr(dl))
        return [(2, f), (1, lambda: e.salu(f"s_add_u32 {S(r)}, {S(r)}, {S(dl)}", sr(r) + sr(dl), sr(r)))]
    def setm0(dst): return [(1, lambda: e.salu(f"s_mov_b32 m0, {S(dst)}", sr(dst), M0))]
    def dmas(srd, src): return [(2, lambda i=i: dma(srd, src, i)) for i in range(4)]
    def sadd(r, c): return [(1, lambda: e.salu(f"s_add_u32 {S(r)}, {S(r)}, {c}", sr(r), sr(r)))]
    def vadd(r, d): return [(1, lambda: e.valu(f"v_add_u32 {V(r)}, {S(d)}, {V(r)}", sr(d) + vr(r), vr(r)))]

    def pair_pre():
        if opts.get("trace", 0): e.salu("s_memrealtime s[80:81]", (), sr(80, 2))
        if ab("nodma"): e.wait_lgkm(0)
        else:
            e.add(Ins("s_waitcnt vmcnt(8) lgkmcnt(0)", 'wait')); e.dsq = []
        if opts.get("trace", 0):
            e.salu(f"s_mov_b32 m0, {S(sP)}", sr(sP), M0); e.nop(1)
            e.add(Ins(f"v_writelane_b32 v254, s80, m0", 'valu', sr(80), vr(254)))
        if not ab("nobar"): e.barrier()
        if opts.get("trace", 0) == 2:
            e.salu("s_memrealtime s[80:81]", (), sr(80, 2)); e.raw("s_waitcnt lgkmcnt(0)", 'wait')
            e.add(Ins(f"v_writelane_b32 v255, s80, m0", 'valu', sr(80), vr(255)))

    st["inloop"] = True
    q_entry = [set(x) for x in e.dsq]
    if stamps: e.salu("s_memtime s[76:77]", (), sr(76, 2))
    pstamp(2)
    loop_start = len(e.out)
    e.label("L_loop")
    def ex1(nA, n):
        return [(nA + 2, setm0(sVdst) + sadd(sVsrc, 0)[:0] + dmas(sV, sVsrc) + sadd(sVsrc, SLOT) + adv(sVdst, sA)),
                (nA + 2, adv(sVrd, sDV) + vadd(VA1, sDV)),
                ]
    def ex2(nA, n):
        return [(2, setm0(sKdst) + dmas(sK, sKsrc) + sadd(sKsrc, SLOT) + adv(sKdst, sA)),
                (2, adv(sKrd, sDK) + vadd(KA1, sDK)),
                (nA - 2, vadd(VA2, sDV)),
                ]
    step(True, KA1, VA1, pre=pair_pre, extras=ex1)
    step(False, KA2, VA2, extras=ex2)
    e.valu(f"v_add_u32 {V(KA2)}, {S(sDK)}, {V(KA2)}", sr(sDK) + vr(KA2), vr(KA2))
    e.salu(f"s_add_u32 {S(sP)}, {S(sP)}, 1", sr(sP), sr(sP))
    e.salu(f"s_cmp_lt_u32 {S(sP)}, 7", sr(sP), ())
    e.branch("s_cbranch_scc1 L_loop")
    loop_end = len(e.out)
    if "nods" not in abl: assert [set(x) for x in e.dsq] == q_entry, (e.dsq, q_entry)
    body = e.out[loop_start:loop_end]
    bad = e.check_seq(body + body, "loop"); assert not bad, bad
    st["inloop"] = False
    if stamps: e.salu("s_memtime s[78:79]", (), sr(78, 2))
    pstamp(3); tstamp(1)

    if opts.get("trace", 0):
        e.valu("v_mov_b32 v11, v254", vr(254), vr(11)) if False else None
    XB = 6 * SLOT
    XW = T0
    def last_pre():
        e.add(Ins("s_waitcnt vmcnt(0) lgkmcnt(0)", 'wait')); e.dsq = []
        e.barrier()
    def ex_last(nA, n):
        it = []
        def addr():
            e.salu(f"s_mul_i32 {S(sA)}, {S(sW)}, 9216", sr(sW), sr(sA))
            e.salu(f"s_xor_b32 {S(sB)}, {S(sW)}, 1", sr(sW), sr(sB))
            e.salu(f"s_mul_i32 {S(sB)}, {S(sB)}, 9216", sr(sB), sr(sB))
            e.salu(f"s_add_u32 {S(sA)}, {S(sA)}, {XB}", sr(sA), sr(sA))
            e.salu(f"s_add_u32 {S(sB)}, {S(sB)}, {XB}", sr(sB), sr(sB))
        def addr2():
            e.valu(f"v_lshl_add_u32 {V(XW)}, v0, 4, {S(sA)}", vr(0) + sr(sA), vr(XW))
            e.valu(f"v_lshl_add_u32 {V(XW+1)}, v0, 4, {S(sB)}", vr(0) + sr(sB), vr(XW + 1))
        it.append((4, [(2, addr), (2, addr2)]))
        w = [(2, lambda db=db: e.ds_write(f"ds_write_b128 {V(XW)}, {O(4, db)} offset:{1024*db}", vr(XW) + O(4, db).regs())) for db in range(8)]
        w.append((1, lambda: e.ds_write(f"ds_write_b32 {V(XW)}, {A(aL+16)} offset:8192", vr(XW) + ar(aL + 16))))
        it.append((nA + 9 + 4, w))
        return it
    step(True, VA2, VA1, pre=last_pre, extras=ex_last, last=True)
    pstamp(4); tstamp(2)
    e.wait_lgkm(0); e.barrier()
    tstamp(3)
    XT = SB
    for db in range(8):
        e.ds_read(f"ds_read_b128 {V(XT+4*db,4)}, {V(XW+1)} offset:{1024*db}", vr(XT + 4 * db, 4), vr(XW + 1))
    e.ds_read(f"ds_read_b32 {V(XT+32)}, {V(XW+1)} offset:8192", vr(XT + 32), vr(XW + 1))
    e.salu(f"s_mov_b32 {S(sLo)}, {f32hex(2.0**opts.get('lo', -10))}", (), sr(sLo))
    e.salu(f"s_mov_b32 {S(sHi)}, {f32hex(512.0)}", (), sr(sHi))
    for q in range(4): e.mfma16(Lb(q), RA(aONE, 4), Pb(False, q))
    WA0, WA1, RA0, RA1, GV = KA1, KA2, VA1, VA2, VD
    u1, u2, u3 = VD + 1, VD + 2, VD + 3
    e.salu(f"s_mul_i32 {S(sA)}, {S(sW)}, {5*4096}", sr(sW), sr(sA))
    e.valu(f"v_and_b32 {V(u1)}, 15, v0", vr(0), vr(u1))
    e.valu(f"v_lshrrev_b32 {V(u2)}, 4, v0", vr(0), vr(u2))
    e.valu(f"v_and_b32 {V(u3)}, 7, v0", vr(0), vr(u3))
    e.valu(f"v_xor_b32 {V(u3)}, {V(u3)}, {V(u2)}", vr(u3) + vr(u2), vr(u3))
    e.valu(f"v_lshlrev_b32 {V(u3)}, 4, {V(u3)}", vr(u3), vr(u3))
    e.valu(f"v_lshl_add_u32 {V(u3)}, {V(u1)}, 8, {V(u3)}", vr(u1) + vr(u3), vr(u3))
    e.valu(f"v_add_u32 {V(WA0)}, {S(sA)}, {V(u3)}", sr(sA) + vr(u3), vr(WA0))
    e.valu(f"v_xor_b32 {V(WA1)}, 64, {V(WA0)}", vr(WA0), vr(WA1))
    e.valu(f"v_xor_b32 {V(u3)}, {V(u1)}, {V(u2)}", vr(u1) + vr(u2), vr(u3))
    e.valu(f"v_lshlrev_b32 {V(u3)}, 4, {V(u3)}", vr(u3), vr(u3))
    e.valu(f"v_lshl_add_u32 {V(u3)}, {V(u2)}, 8, {V(u3)}", vr(u2) + vr(u3), vr(u3))
    e.valu(f"v_add_u32 {V(RA0)}, {S(sA)}, {V(u3)}", sr(sA) + vr(u3), vr(RA0))
    e.valu(f"v_xor_b32 {V(RA1)}, 64, {V(RA0)}", vr(RA0), vr(RA1))
    e.valu(f"v_lshlrev_b32 {V(GV)}, 4, v0", vr(0), vr(GV))
    e.salu(f"s_lshl_b32 {S(sC)}, {S(sW)}, 14", sr(sW), sr(sC))
    RC = PF
    def lcheck(rc, bad, firstc):
        e.valu(f"v_med3_f32 {V(T1)}, {V(rc)}, {S(sLo)}, {V(T1+1)}", vr(rc) + sr(sLo) + vr(T1 + 1), vr(T1))
        e.valu(f"v_cmp_neq_f32 vcc, {V(T1)}, {V(rc)}", vr(T1) + vr(rc), VCC)
        if firstc: e.salu(f"s_mov_b64 {S(bad,2)}, vcc", VCC, sr(bad, 2))
        else: e.salu(f"s_or_b64 {S(bad,2)}, {S(bad,2)}, vcc", VCC + sr(bad, 2), sr(bad, 2))
    e.valu(f"v_mov_b32 {V(T1+1)}, {S(sHi)}", sr(sHi), vr(T1 + 1))
    PK = opts.get("pk", 0)
    def fin_ops(q, rc):
        ops = []
        for k in range(4):
            tt = PF + 8 + 4 * (k % 3)
            for b in range(2):
                o = O(q, 2 * k + b).base
                if PK:
                    for h in range(2):
                        ops.append(lambda o=o, h=h: e.valu(f"v_pk_mul_f32 {V(o+2*h,2)}, {V(o+2*h,2)}, {V(rc,2)} op_sel_hi:[1,0]", vr(o + 2 * h, 2) + vr(rc), vr(o + 2 * h, 2)))
                else:
                    for i in range(4):
                        ops.append(lambda o=o, i=i: e.valu(f"v_mul_f32 {V(o+i)}, {V(o+i)}, {V(rc)}", vr(o + i) + vr(rc), vr(o + i)))
                for h in range(2):
                    ops.append(lambda o=o, h=h, b=b, tt=tt: e.valu(f"v_cvt_pk_bf16_f32 {V(tt+2*b+h)}, {V(o+2*h)}, {V(o+2*h+1)}", vr(o + 2 * h, 2), vr(tt + 2 * b + h)))
            wa = WA0 if k % 2 == 0 else WA1
            ops.append(lambda k=k, tt=tt, wa=wa: e.ds_write(f"ds_write_b128 {V(wa)}, {V(tt,4)} offset:{q*4096 + 128*(k>>1)}", vr(wa) + vr(tt, 4)))
        return ops
    def rd_ops(q, rows=range(4), ra=None):
        ops = []
        for i in rows:
            r = (ra or (RA0, RA1))[i % 2]
            d = O(q, 0).base + 4 * i
            ops.append(lambda i=i, r=r, d=d: e.ds_read(f"ds_read_b128 {V(d,4)}, {V(r)} offset:{q*4096 + 1024*i}", vr(d, 4), vr(r)))
        return ops
    def st_ops(q, soff, rows=range(4), gv=GV):
        ops = []
        for i in rows:
            d = O(q, 0).base + 4 * i
            ops.append(lambda i=i, d=d: e.vstore(f"buffer_store_dwordx4 {V(d,4)}, {V(gv)}, {S(sO,4)}, {S(soff)} offen offset:{1024*i} {STF}", vr(d, 4) + vr(gv) + sr(sO, 4) + sr(soff)))
        return ops
    def run(ops):
        for o in ops: o()
    def inter(mfs, ops, per=2):
        k = 0
        for m in mfs:
            m()
            for _ in range(per):
                if k < len(ops): ops[k](); k += 1
        run(ops[k:])
    def blk(q): return [lambda db=db: e.mfma16(O(q, db), Vf(aK, db), Pb(False, q)) for db in range(8)]
    pre = []
    for qq in range(5):
        pre.append(lambda qq=qq: e.valu(f"v_accvgpr_read_b32 {V(RC+qq)}, {A(aL+4*qq)}", ar(aL + 4 * qq), vr(RC + qq)))
        if qq == 4: pre.append(lambda: e.valu(f"v_add_f32 {V(RC+4)}, {V(RC+4)}, {V(XT+32)}", vr(RC + 4) + vr(XT + 32), vr(RC + 4)))
        pre.append(lambda qq=qq: lcheck(RC + qq, sBad if qq < 4 else sBadX, qq in (0, 4)))
        pre.append(lambda qq=qq: e.trans(f"v_rcp_f32 {V(RC+qq)}, {V(RC+qq)}", vr(RC + qq), vr(RC + qq)))
    xadd = [lambda i=i: e.valu(f"v_add_f32 {V(OB+128+i)}, {V(OB+128+i)}, {V(XT+i)}", vr(OB + 128 + i) + vr(XT + i), vr(OB + 128 + i)) for i in range(32)]
    inter(blk(0), xadd)
    run(pre)
    XR0, XR1, XG = XW, XW + 1, T1 + 2
    def xaddr():
        e.salu(f"s_lshl_b32 {S(sA)}, {S(sPar)}, 11", sr(sPar), sr(sA))
        e.valu(f"v_add_u32 {V(XR0)}, {S(sA)}, {V(RA0)}", sr(sA) + vr(RA0), vr(XR0))
        e.valu(f"v_add_u32 {V(XR1)}, {S(sA)}, {V(RA1)}", sr(sA) + vr(RA1), vr(XR1))
        e.salu(f"s_add_u32 {S(sB)}, {S(sXg)}, {S(sA)}", sr(sXg) + sr(sA), sr(sB))
        e.salu(f"s_add_u32 {S(sB)}, {S(sB)}, 65536", sr(sB), sr(sB))
    inter(blk(1), fin_ops(4, RC + 4))
    xaddr()
    run(rd_ops(4, rows=range(2), ra=(XR0, XR1)))
    tstamp(4)
    inter(blk(2), fin_ops(0, RC + 0))
    e.salu(f"s_cmp_lg_u64 {S(sBadX,2)}, 0", sr(sBadX, 2), ())
    e.branch("s_cbranch_scc1 L_xskip")
    run(st_ops(4, sB, rows=range(2)))
    e.label("L_xret")
    run(rd_ops(0))
    inter(blk(3), fin_ops(1, RC + 1))
    run(st_ops(0, sC)); run(rd_ops(1))
    e.salu(f"s_add_u32 {S(sA)}, {S(sC)}, 4096", sr(sC), sr(sA))
    run(fin_ops(2, RC + 2))
    run(st_ops(1, sA)); run(rd_ops(2))
    e.salu(f"s_add_u32 {S(sB)}, {S(sC)}, 8192", sr(sC), sr(sB))
    stamp(5)
    run(fin_ops(3, RC + 3))
    run(st_ops(2, sB)); run(rd_ops(3))
    e.salu(f"s_add_u32 {S(sA)}, {S(sC)}, 12288", sr(sC), sr(sA))
    run(st_ops(3, sA))
    if stamps == 2:
        e.wait_vm(0); stamp(6)
        e.salu("s_load_dwordx2 s[58:59], s[0:1], 32", (), sr(58, 2))
        e.raw("s_waitcnt lgkmcnt(0)", 'wait')
        e.salu(f"s_cmp_lg_u32 {S(sW)}, 0"); e.branch("s_cbranch_scc1 L_end")
        T = SB
        e.valu("v_cmp_eq_u32 vcc, 0, v0", vr(0), VCC)
        e.salu("s_and_saveexec_b64 s[56:57], vcc", VCC)
        e.valu(f"v_mov_b32 {V(T)}, 0", (), vr(T))
        k = [0]
        def at(op, idx, expr):
            expr()
            e.valu(f"v_mov_b32 {V(T+1+k[0])}, s74", sr(74), vr(T + 1 + k[0]))
            e.vstore(f"global_atomic_{op} {V(T)}, {V(T+1+k[0])}, s[58:59] offset:{4*idx}", vr(T) + vr(T + 1 + k[0]) + sr(58, 2))
            k[0] += 1
        at("umax", 0, lambda: e.salu("s_not_b32 s74, s60", (), sr(74)))
        at("umax", 1, lambda: e.salu("s_mov_b32 s74, s60", (), sr(74)))
        at("umax", 2, lambda: e.salu("s_mov_b32 s74, s62", (), sr(74)))
        at("umax", 3, lambda: e.salu("s_mov_b32 s74, s66", (), sr(74)))
        at("umax", 4, lambda: e.salu("s_mov_b32 s74, s72", (), sr(74)))
        at("umax", 5, lambda: e.salu("s_not_b32 s74, s72", (), sr(74)))
        at("add", 6, lambda: e.salu("s_sub_u32 s74, s62, s60", (), sr(74)))
        at("add", 7, lambda: e.salu("s_sub_u32 s74, s66, s60", (), sr(74)))
        at("add", 8, lambda: e.salu("s_sub_u32 s74, s72, s60", (), sr(74)))
        at("add", 9, lambda: e.salu("s_sub_u32 s74, s78, s76", (), sr(74)))
        at("umax", 10, lambda: e.salu("s_sub_u32 s74, s72, s60", (), sr(74)))
        at("umax", 11, lambda: e.salu("s_sub_u32 s74, s62, s60", (), sr(74)))
        at("add", 12, lambda: e.salu("s_sub_u32 s74, s66, s64", (), sr(74)))
        at("add", 13, lambda: e.salu("s_and_b32 s74, s60, 0xffff", (), sr(74)))
        at("umax", 14, lambda: e.salu("s_not_b32 s74, s62", (), sr(74)))
        at("umax", 15, lambda: e.salu("s_not_b32 s74, s66", (), sr(74)))
    elif stamps:
        e.wait_vm(0); stamp(6)
        e.raw("s_waitcnt lgkmcnt(0)", 'wait')
        e.salu(f"s_cmp_lg_u32 {S(sW)}, 0"); e.branch("s_cbranch_scc1 L_end")
        T = SB
        for i in range(14): e.valu(f"v_mov_b32 {V(T+i)}, {S(60+i)}", sr(60 + i), vr(T + i))
        e.salu("s_sub_u32 s78, s78, s76")
        e.valu(f"v_mov_b32 {V(T+14)}, s78", (), vr(T + 14)); e.valu(f"v_mov_b32 {V(T+15)}, 0", (), vr(T + 15))
        e.salu("s_lshl_b32 s57, s2, 6"); e.salu("s_add_u32 s58, s58, s57"); e.salu("s_addc_u32 s59, s59, 0")
        e.valu(f"v_mov_b32 {V(T+16)}, 0", (), vr(T + 16))
        e.valu("v_cmp_eq_u32 vcc, 0, v0", vr(0), VCC)
        e.salu("s_and_saveexec_b64 s[56:57], vcc", VCC)
        for i in range(4):
            e.vstore(f"global_store_dwordx4 {V(T+16)}, {V(T+4*i,4)}, s[58:59] offset:{16*i}", vr(T + 16) + vr(T + 4 * i, 4) + sr(58, 2))
        if opts.get("trace", 0):
            e.salu("s_mov_b64 exec, -1")
            e.valu("v_cmp_gt_u32 vcc, 8, v0", vr(0), VCC)
            e.salu("s_and_saveexec_b64 s[56:57], vcc", VCC)
            e.valu(f"v_lshlrev_b32 {V(T+16)}, 2, v0", vr(0), vr(T + 16))
            e.valu(f"v_add_u32 {V(T+16)}, 16384, {V(T+16)}", vr(T + 16), vr(T + 16))
            e.vstore(f"global_store_dword {V(T+16)}, v254, s[58:59]", vr(T + 16) + vr(254) + sr(58, 2))
            e.vstore(f"global_store_dword {V(T+16)}, v255, s[58:59] offset:32", vr(T + 16) + vr(255) + sr(58, 2))
    if not stamps:
        slow_path(e, sQ, sK, sV, sO, sW, sPar, sBad, sBadX)
    e.label("L_end"); e.raw("s_endpgm")
    e.label("L_xskip"); e.raw("s_waitcnt lgkmcnt(0)", 'wait'); e.nop(2); e.branch("s_branch L_xret")
    e.raw("s_endpgm")
    sys.stderr.write(f"auto nops: {e.nops}; instrs {len(e.out)}; loop instrs {loop_end-loop_start}\n")
    for x in e.auto_nop_log: sys.stderr.write(f"  nop {x} {'LOOP' if loop_start <= x[0] < loop_end else ''}\n")
    sys.stderr.write(f"auto waits: {[(x, 'L' if loop_start <= x[0] < loop_end else '') for x in e.auto_wait_log]}\n")
    return e.text()

HEAD = f"""; GQA softmax attention (generated)
; @launch grid=(256,1,1) block=(256,1,1) lds=163840
.amdgcn_target "amdgcn-amd-amdhsa--gfx950"
.text
.globl {KN}
.p2align 8
.type {KN},@function
{KN}:
"""
TAIL = f"""
.section .rodata,"a"
.p2align 6
.amdhsa_kernel {KN}
  .amdhsa_next_free_vgpr 424
  .amdhsa_next_free_sgpr 102
  .amdhsa_accum_offset 256
  .amdhsa_group_segment_fixed_size 0
  .amdhsa_kernarg_size 48
  .amdhsa_user_sgpr_count 2
  .amdhsa_user_sgpr_kernarg_segment_ptr 1
  .amdhsa_system_sgpr_workgroup_id_x 1
.end_amdhsa_kernel
"""
if __name__ == "__main__":
    opts = {}
    for a in sys.argv[1:]:
        k, v = a.split("="); opts[k] = int(v) if v.lstrip("-").isdigit() else v
    import head
    sys.stdout.write(head.head() + gen(opts) + head.tail(424))
```
